```python
import torch

def _softmax(x, axis=-1):
    return torch.softmax(x, dim=axis)
def _gelu(x):
    return torch.nn.functional.gelu(x, approximate="tanh")
def _silu(x):
    return torch.nn.functional.silu(x)
def _sigmoid(x):
    return torch.sigmoid(x)
def _layernorm(x, axis=-1, eps=1e-5):
    m = x.mean(dim=axis, keepdim=True)
    v = x.var(dim=axis, keepdim=True, unbiased=False)
    return (x - m) / torch.sqrt(v + eps)
def _scatter_add(tgt, idx, src, axis=0):
    return tgt.clone().index_add_(axis, idx, src)
def _segment_sum(src, seg, n):
    out = torch.zeros((n,) + src.shape[1:], dtype=src.dtype)
    return out.index_add_(0, seg, src)
def _pad(x, pw):
    flat = tuple(v for pair in reversed(pw) for v in pair)
    return torch.nn.functional.pad(x, flat)

kernel_name = 'gated_mix__linear_attn_block__dense_activation_mish__prompt'

def setup_inputs():

    _w = (lambda a: (lambda t: t.to(torch.bfloat16) if t.is_floating_point() else t)(torch.as_tensor(a)))
    def _A_setup():
        B, S, D = 1, 2048, 448
        return {
            "x": _w((lambda *s: torch.randn(*s, dtype=torch.bfloat16) * 0.05)(B, S, D)),
            "wqkv": _w((lambda *s: torch.randn(*s, dtype=torch.bfloat16) * 0.8)(D, 3 * D)),
            "wo": _w((lambda *s: torch.randn(*s, dtype=torch.bfloat16) * 0.1)(D, D)),
        }
    _A_in = _A_setup()

    def _B_setup():
        B, S, D, F = 1, 2048, 448, 1792
        return {
            "x": _w((lambda *s: torch.randn(*s, dtype=torch.bfloat16) * 0.05)(B, S, D)),
            "w1": _w((lambda *s: torch.randn(*s, dtype=torch.bfloat16) * 12.8)(D, F) * (D ** -0.5)),
            "b1": _w((lambda *s: torch.randn(*s, dtype=torch.bfloat16) * 0.2)(F)),
            "w2": _w((lambda *s: torch.randn(*s, dtype=torch.bfloat16) * 0.05)(F, D) * (F ** -0.5)),
        }
    _B_in = _B_setup()

    return {
        "A_x": _A_in["x"],
        "A_wqkv": _A_in["wqkv"],
        "A_wo": _A_in["wo"],
        "B_x": _B_in["x"],
        "B_w1": _B_in["w1"],
        "B_b1": _B_in["b1"],
        "B_w2": _B_in["w2"],
        "gate_w": _w((lambda *s: torch.randn(*s, dtype=torch.bfloat16) * 0.05)(448) * 16.0),
    }

def reference(A_x, A_wqkv, A_wo, B_x, B_w1, B_b1, B_w2, gate_w):
    def _A_ref(x, wqkv, wo):
        B, S, D = x.shape
        H = 16; Dh = D // H
        qkv = (lambda x, *d: x.permute(*d))((x @ wqkv).reshape(B, S, 3, H, Dh), 2, 0, 3, 1, 4)
        q, k, v = qkv[0], qkv[1], qkv[2]
        phi = lambda t: torch.where(t > 0, t + 1, torch.exp(t)) + 1e-6
        pq, pk = phi(q), phi(k)
        kv = torch.einsum("bhsd,bhse->bhde", pk, v)
        z = torch.einsum("bhsd->bhd", pk)
        num = torch.einsum("bhqd,bhde->bhqe", pq, kv)
        den = torch.einsum("bhqd,bhd->bhq", pq, z)[..., None] + 1e-6
        o = num / den
        return (lambda x, *d: x.permute(*d))(o, 0, 2, 1, 3).reshape(B, S, D) @ wo

    def _B_ref(x, w1, b1, w2):
        h = torch.einsum("bsd,df->bsf", x, w1) + b1
        sp = torch.log1p(torch.exp(-torch.abs(h))) + torch.where(h > 0, h, torch.zeros_like(h))
        act = h * torch.tanh(sp)
        return torch.einsum("bsf,fd->bsd", act, w2)

    x = A_x
    g = _sigmoid((x * gate_w).sum(-1, keepdims=True))
    a = _A_ref(x, A_wqkv, A_wo)
    b = _B_ref(x, B_w1, B_b1, B_w2)
    return g * a + (1 - g) * b
```

```python
import re
TRANS = ("v_exp_f32", "v_rcp_f32", "v_log_f32", "v_rsq_f32", "v_sqrt_f32")
RE_REG = re.compile(r"^-?\|?([vas])(\d+)\|?$")
RE_RNG = re.compile(r"^-?\|?([vas])\[(\d+):(\d+)\]\|?$")

def regs_of(tok):
    tok = tok.strip()
    m = RE_REG.match(tok)
    if m: return [(m.group(1), int(m.group(2)))]
    m = RE_RNG.match(tok)
    if m: return [(m.group(1), k) for k in range(int(m.group(2)), int(m.group(3)) + 1)]
    if tok == "vcc": return [("s", 106), ("s", 107)]
    if tok == "vcc_lo": return [("s", 106)]
    if tok == "vcc_hi": return [("s", 107)]
    if tok == "m0": return [("m0", 0)]
    if tok in ("exec", "exec_lo", "exec_hi"): return [("exec", 0)]
    return []

class Ins:
    def __init__(self, text):
        self.text = text
        t = text.split(";")[0].strip()
        sp = t.split(None, 1)
        self.op = op = sp[0]
        rest = sp[1] if len(sp) > 1 else ""
        ops, depth, cur = [], 0, ""
        for ch in rest:
            if ch == "[": depth += 1
            if ch == "]": depth -= 1
            if ch == "," and depth == 0:
                ops.append(cur.strip()); cur = ""
            else: cur += ch
        if cur.strip(): ops.append(cur.strip())
        mods = ""
        if ops:
            l = ops[-1].split(None, 1)
            ops[-1] = l[0]
            mods = l[1] if len(l) > 1 else ""
        self.ops, self.mods = ops, mods
        R = [regs_of(o) for o in ops]
        self.dst, self.src, self.C, self.data = [], [], [], []
        self.dpp = False
        if op.startswith("v_mfma"):
            self.kind = "mfma"; self.dst = R[0]; self.src = R[1] + R[2]; self.C = R[3]
        elif op.startswith("v_"):
            self.kind = "trans" if op.replace("_e64", "").replace("_e32", "") in TRANS else "valu"
            self.dst = R[0]; self.src = sum(R[1:], [])
            if "dpp" in op or "row_" in mods or "quad_perm" in mods: self.dpp = True
            if op.startswith("v_permlane"): self.dpp = True; self.dst = R[0] + R[1]; self.src = R[0] + R[1]
            if op.startswith("v_fmac") or op.startswith("v_writelane"): self.src += R[0]
        elif op.startswith("ds_read"):
            self.kind = "dsr"; self.dst = R[0]; self.src = R[1]
        elif op.startswith("ds_write"):
            self.kind = "dsw"; self.src = sum(R, [])
        elif op.startswith("buffer_load"):
            if re.search(r"\blds\b", mods):
                self.kind = "dma"; self.src = sum(R, []) + [("m0", 0)]
            else:
                self.kind = "vld"; self.dst = R[0]; self.src = sum(R[1:], [])
        elif op.startswith("buffer_store"):
            self.kind = "vst"; self.src = sum(R, []); self.data = R[0]
        elif op.startswith("s_load") or op.startswith("s_memrealtime") or op.startswith("s_memtime"):
            self.kind = "smem"; self.dst = R[0]; self.src = sum(R[1:], [])
        elif op in ("s_waitcnt", "s_barrier", "s_nop", "s_endpgm", "s_branch", "s_setprio") or op.startswith("s_cbranch"):
            self.kind = "ctl"
        elif op.startswith("s_cmp"):
            self.kind = "salu"; self.src = sum(R, [])
        elif op.startswith("s_"):
            self.kind = "salu"; self.dst = R[0]; self.src = sum(R[1:], [])
        else:
            raise ValueError("unknown op " + text)

class Gen:
    def __init__(self):
        self.out = []
        self.n = 0
        self.w = {}
        self.cread = {}
        self.stdata = {}
        self.vm = []
        self.lg = []
        self.smem = False
        self.smem_regs = set()
        self.optional = False
        self.nops = 0
        self.maxvm = 0
        self.stats = {}
    def raw(self, s): self.out.append(s)
    def label(self, s): self.out.append(s + ":")
    def comment(self, s): self.out.append("  ; " + s)
    def _emit(self, text, states=1):
        self.out.append("  " + text); self.n += states
    def nop(self, k):
        while k > 0:
            c = min(k, 8); self._emit("s_nop %d" % (c - 1), c); k -= c; self.nops += c
    def _waitcnt(self, vi, li):
        parts = []
        if vi is not None:
            n = sum(0 if e[2] else 1 for e in self.vm[vi + 1:])
            assert n <= 63
            parts.append("vmcnt(%d)" % n); self.vm = self.vm[vi + 1:]
        if li is not None:
            if li == "all" or self.smem:
                parts.append("lgkmcnt(0)"); self.lg = []; self.smem = False; self.smem_regs = set()
            else:
                n = sum(0 if e[2] else 1 for e in self.lg[li + 1:])
                n = min(n, 15)
                parts.append("lgkmcnt(%d)" % n); self.lg = self.lg[li + 1:]
        if parts: self._emit("s_waitcnt " + " ".join(parts))
    def wait(self, vm=None, lg=None):
        def find(q, tags):
            if tags is None: return None
            if tags == "all": return len(q) - 1 if q else None
            if isinstance(tags, str): tags = [tags]
            idx = None
            for k, e in enumerate(q):
                if e[0] in tags: idx = k
            return idx
        vi = find(self.vm, vm); li = find(self.lg, lg)
        if lg == "all" and self.smem: li = "all"
        self._waitcnt(vi, li)
    def E(self, text, tag=None):
        I = Ins(text)
        k = I.kind
        self.stats[k] = self.stats.get(k, 0) + 1
        touched = set(I.src) | set(I.dst) | set(I.C)
        vi = li = None
        for idx, e in enumerate(self.vm):
            if e[1] & touched: vi = idx
        for idx, e in enumerate(self.lg):
            if e[1] & touched: li = idx
        if self.smem and (self.smem_regs & touched): li = "all"
        if k in ("vld", "vst", "dma") and len(self.vm) >= 62:
            vi = max(vi if vi is not None else -1, len(self.vm) - 62)
        self._waitcnt(vi, li)
        need = 0
        def req(state, ws):
            nonlocal need
            d = self.n - state - 1
            if ws - d > need: need = ws - d
        isvalu = k in ("valu", "trans")
        mem = k in ("dsr", "dsw", "vld", "vst", "dma")
        for r in set(I.src) | set(I.C):
            if r not in self.w: continue
            st, pk, key = self.w[r]
            if pk in ("valu", "trans"):
                if r[0] in "va":
                    if k == "mfma": req(st, 2)
                    if isvalu and I.dpp: req(st, 2)
                    if I.op.startswith("v_readfirstlane") or I.op.startswith("v_readlane"): req(st, 1)
                    if pk == "trans" and k == "valu": req(st, 1)
                elif r[0] == "s":
                    if isvalu: req(st, 2)
                    if k in ("vld", "vst", "dma"): req(st, 5)
            elif pk == "mfma":
                if k == "mfma":
                    if r in I.src: req(st, 8)
                    if r in I.C and tuple(I.C) != key: req(st, 6)
                elif isvalu or mem: req(st, 8)
            elif pk == "salu" and r[0] == "m0" and k == "dma": req(st, 1)
        for r in I.dst:
            if r in self.w:
                st, pk, key = self.w[r]
                if pk == "mfma" and (isvalu or k in ("dsr", "vld")): req(st, 8)
                if pk == "mfma" and k == "mfma" and tuple(I.dst) != key: req(st, 8)
            if r in self.cread and (isvalu or k in ("dsr", "vld")): req(self.cread[r], 3)
            if r in self.stdata: req(self.stdata[r], 2 if isvalu else 1)
        if need > 0: self.nop(need)
        st = self.n
        self._emit(text)
        for r in I.dst: self.w[r] = (st, k, tuple(I.dst))
        for r in I.C: self.cread[r] = st
        if k == "vst" and len(I.data) >= 3:
            for r in I.data: self.stdata[r] = st
        if k in ("vld", "vst", "dma"):
            self.vm.append([tag, set(I.dst), self.optional]); self.maxvm = max(self.maxvm, len(self.vm))
        if k in ("dsr", "dsw"): self.lg.append([tag, set(I.dst), self.optional])
        if k == "smem": self.smem = True; self.smem_regs |= set(I.dst)
    def run(self, items):
        for it in items:
            if callable(it): it()
            elif isinstance(it, tuple): self.E(it[0], it[1])
            else: self.E(it)
    def text(self): return "\n".join(self.out) + "\n"

def v(n, k=1): return "v%d" % n if k == 1 else "v[%d:%d]" % (n, n + k - 1)
def a(n, k=1): return "a%d" % n if k == 1 else "a[%d:%d]" % (n, n + k - 1)
def s(n, k=1): return "s%d" % n if k == 1 else "s[%d:%d]" % (n, n + k - 1)

def spread(main, fill, start=0):
    ism = lambda it: (isinstance(it, str) and it.startswith("v_mfma")) or (isinstance(it, tuple) and it[0].startswith("v_mfma"))
    nm = sum(1 for it in main if ism(it)) - start
    out, done, m = [], 0, -start
    for it in main:
        out.append(it)
        if ism(it):
            m += 1
            if m > 0:
                tgt = (len(fill) * m + nm - 1) // nm if nm > 0 else len(fill)
                while done < tgt: out.append(fill[done]); done += 1
    out += fill[done:]
    return out
```

```python
import sys, copy, struct
sys.path.insert(0, "work")
from asmgen import *
NAME = "gated_mix__linear_attn_block__dense_activation_mish__prompt"
SEL = [x[5:].split(",") for x in sys.argv if x.startswith("--st=")]
SEL = SEL[0] if SEL else []
STAMPS = bool(SEL)
OUTF = [x for x in sys.argv[1:] if not x.startswith("--")][0]
def fbits(x): return "0x%08x" % struct.unpack("<I", struct.pack("<f", x))[0]
LOG2E = 1.4426950408889634

FL, KVB, PWB, ACTB, STB = 0x1000, 0x40000, 0x140000, 0x300000, 0xD00000
OOB = 0x40000000
T_PW, T_KV, T_ACT, T_O = 0, 1, 2, 6
U = lambda n: 16384 * n
STG = U(9); MISC = U(9) + 8192; KVF = MISC + 1024
WB_UNITS = [8, 3, 7, 0, 4, 1, 5, 2, 6]
KREL = [0, 4, 8, 10, 1, 5, 9, 11, 2, 6, 7, 12, 3, 13]
SX, SWQ, SW1, SW2, SWO, SWS, SOUT, SB1, SGW = 8, 12, 16, 20, 24, 28, 32, 36, 40
sI, sH, sW, sJ4, sJ, sLA, sLB, sR, sCS, sCNT = 44, 45, 46, 47, 48, 49, 50, 51, 52, 53
sT = 54
sMC = 60
sPC = 62
sE6 = 64
sQ = 65
sM12 = 66
sM48 = 68
sKA = 70
sW2w, sWOw, sAw, sAo = 74, 75, 76, 77
sSO = 78
sSO2 = 79
sSO3 = 80
sPM = 82
KA = 84
vL = 1
vX = 2; vW1 = 6; vXr = 10; vW1r = 12; vR = 16; vRr = 17; vG = 19; vP = 20; vBa = 21; vBb = 22
vL16 = 23
vPW = 26; vA = 27; vAL = 28; vFW = 29; vP16 = 30; vPA = 31; vWB = 32; vWBr = 36
vN = 48; vPoll = 50; vKVs = 52; vKVg = 53; vGw = 54; vGr = 55; vGr2 = 56; vKVFw = 57; vSw = 58; vSr = 59
vO = 60; vFw = 61; vFr = 62; vT = 63
accH = lambda b, t, rt: 64 + ((b * 2 + t) * 2 + rt) * 4
bias = lambda b, t: 128 + (b * 2 + t) * 4
accK = lambda dt, rt: 160 + (dt * 2 + rt) * 4
accV = lambda dt, rt: 176 + (dt * 2 + rt) * 4
accQ = lambda dt, rt: 192 + (dt * 2 + rt) * 4
vC6 = 208; vF0 = 208; vF1 = 212; vZ = 216; vOG = 220
BUF = lambda n: 224 + 8 * (n % 4)
xf = lambda ks, rt: (ks * 2 + rt) * 4
accB = lambda rt, ct: 64 + (rt * 4 + ct) * 4
def actreg(n): return 112 + 16 * n if n < 9 else (16 * (n - 9) if n < 16 else 112 + 16 * (n - 16))

G = Gen(); E = G.E
nst = [0]
stn = ["start"]
def stamp(name):
    if name in SEL:
        k = nst[0]; nst[0] += 1
        assert k < 8
        stn.append(name)
        E("s_memrealtime %s" % s(KA + 2 * k, 2))
def ST(name): return lambda: stamp(name)
spins = []
def poll_load(vaddr, typ):
    so = "0"
    it = []
    if typ:
        it.append("s_mov_b32 %s, %d" % (s(sSO3), typ * 32768)); so = s(sSO3)
    it.append(("buffer_load_dwordx2 %s, %s, %s, %s offen sc1" % (v(vPoll, 2), v(vaddr), s(SWS, 4), so), "poll"))
    return it
def poll_check(vaddr, typ, mask):
    k = len(spins)
    G.wait(vm="poll")
    G.label("L_chk%d" % k)
    E("s_mov_b32 %s, 0x%x" % (s(sPM), mask & 0xffffffff))
    E("s_mov_b32 %s, 0x%x" % (s(sPM + 1), mask >> 32))
    E("v_cmp_ne_u64 vcc, %s, %s" % (v(vPoll, 2), v(vN, 2)))
    E("s_and_b64 %s, %s, vcc" % (s(sPM, 2), s(sPM, 2)))
    E("s_cbranch_scc1 L_spin%d" % k)
    G.label("L_ok%d" % k)
    spins.append((k, vaddr, typ))
def emit_spins():
    for k, vaddr, typ in spins:
        G.label("L_spin%d" % k)
        G.raw("  s_cmp_eq_u32 %s, 0" % s(sCNT))
        G.raw("  s_cbranch_scc1 L_ok%d" % k)
        G.raw("  s_sub_u32 %s, %s, 1" % (s(sCNT), s(sCNT)))
        G.raw("  s_mov_b32 %s, %d" % (s(sSO3), typ * 32768))
        G.raw("  buffer_load_dwordx2 %s, %s, %s, %s offen sc1" % (v(vPoll, 2), v(vaddr), s(SWS, 4), s(sSO3)))
        G.raw("  s_waitcnt vmcnt(0)")
        G.raw("  s_branch L_chk%d" % k)
def flag(typ, tag):
    def f():
        G.wait(vm=tag)
        so = "0"
        if typ:
            E("s_mov_b32 %s, %d" % (s(sSO3), typ * 32768)); so = s(sSO3)
        E("buffer_store_dwordx2 %s, %s, %s, %s offen sc1" % (v(vN, 2), v(vFW), s(SWS, 4), so), "flag")
    return f
def W(vm=None, lg=None): return lambda: G.wait(vm=vm, lg=lg)
BAR = "s_barrier"
MF = "v_mfma_f32_16x16x32_bf16"

class Unit:
    def __init__(self, pre, reads, mf, fill=None): self.pre, self.reads, self.mf, self.fill = pre, reads, mf, fill or []
def pipeline(units, L):
    seq = []
    N = len(units)
    for n in range(-L, N):
        rd = units[n + L] if n + L < N else None
        mm = units[n] if n >= 0 else None
        if rd: seq += rd.pre
        R = rd.reads if rd else []
        M = mm.mf if mm else []
        part = []
        for k in range(max(len(R), len(M))):
            if k < len(M): part.append(M[k])
            if k < len(R): part.append(R[k])
        if mm and mm.fill: part = spread(part, mm.fill)
        seq += part
    return seq
def distribute(units, fill, lo=0, hi=None):
    hi = len(units) if hi is None else hi
    n = hi - lo
    for k in range(n):
        units[lo + k].fill = units[lo + k].fill + fill[len(fill) * k // n: len(fill) * (k + 1) // n]

E("s_cmp_ge_u32 s2, 256"); E("s_cbranch_scc1 L_end")
E("s_load_dwordx16 %s, s[0:1], 0" % s(KA, 16))
E("s_load_dwordx2 %s, s[0:1], 80" % s(SWS, 2))
E("s_load_dwordx2 %s, s[0:1], 64" % s(SOUT, 2))
if STAMPS: E("s_memrealtime s[100:101]")
E("v_lshrrev_b32 %s, 6, v0" % v(vT)); E("v_and_b32 %s, 63, v0" % v(vL))
E("s_bfe_u32 %s, s2, 0x20001" % s(sT)); E("s_bfe_u32 %s, s2, 0x20003" % s(sT + 1))
E("v_readfirstlane_b32 %s, %s" % (s(sW), v(vT)))
E("s_lshl2_add_u32 %s, %s, %s" % (s(sI), s(sT), s(sT + 1)))
E("s_and_b32 %s, s2, 1" % s(sT)); E("s_lshr_b32 %s, s2, 5" % s(sT + 1))
E("s_lshl3_add_u32 %s, %s, %s" % (s(sH), s(sT), s(sT + 1)))
for srd, n in ((SX, 1835008), (SWQ, 1204224), (SW1, 1605632), (SWS, 0x10000000), (SGW, 896), (SB1, 3584)):
    E("s_mov_b32 %s, %d" % (s(srd + 2), n)); E("s_mov_b32 %s, 0x20000" % s(srd + 3))
E("s_lshl_b32 %s, %s, 12" % (s(sQ), s(sW)))
E("s_lshr_b32 %s, %s, 2" % (s(sJ4), s(sH))); E("s_and_b32 %s, %s, 3" % (s(sJ), s(sH)))
E("s_lshl_b32 %s, %s, 2" % (s(sT), s(sJ)))
E("s_lshr_b32 %s, 0x5420, %s" % (s(sLA), s(sT))); E("s_and_b32 %s, %s, 15" % (s(sLA), s(sLA)))
E("s_lshr_b32 %s, 0x6331, %s" % (s(sLB), s(sT))); E("s_and_b32 %s, %s, 15" % (s(sLB), s(sLB)))
E("v_lshrrev_b32 v64, 3, v1"); E("v_and_b32 v65, 7, v1"); E("v_lshrrev_b32 v66, 4, v1"); E("v_lshrrev_b32 v67, 5, v1")
E("v_bfe_u32 v68, v1, 2, 2"); E("v_and_b32 v69, 3, v1"); E("v_and_b32 v70, 1, v66"); E("v_and_b32 v71, 15, v1")
E("v_lshl_add_u32 v72, v67, 2, v68"); E("v_lshl_add_u32 v72, v70, 3, v72")
E("v_mul_u32_u24 v72, 2688, v72")
E("v_lshlrev_b32 v73, 1, v70"); E("v_xor_b32 v73, v73, v69"); E("v_lshl_add_u32 v72, v73, 4, v72")
E("s_add_u32 %s, %s, 1" % (s(sT), s(sW))); E("s_mul_i32 %s, %s, 896" % (s(sT), s(sT)))
E("s_cmp_eq_u32 %s, 2" % s(sW)); E("s_cselect_b32 %s, 0, %s" % (s(sT), s(sT)))
E("s_cmp_eq_u32 %s, 3" % s(sW)); E("s_cselect_b32 %s, 0x%x, %s" % (s(sT), OOB, s(sT)))
E("s_mul_i32 %s, %s, %d" % (s(sT + 1), s(sI), 32 * 2688)); E("s_add_u32 %s, %s, %s" % (s(sT), s(sT), s(sT + 1)))
E("s_mul_i32 %s, %s, 56" % (s(sT + 1), s(sH))); E("s_add_u32 %s, %s, %s" % (s(sT), s(sT), s(sT + 1)))
E("v_add_u32 %s, %s, v72" % (v(vR), s(sT)))
E("s_lshl2_add_u32 %s, %s, %s" % (s(sT), s(sI), s(sW))); E("s_mul_i32 %s, %s, %d" % (s(sT), s(sT), 32 * 896))
E("v_mul_u32_u24 v72, 896, v64"); E("v_xor_b32 v73, v65, v66"); E("v_add_u32 v72, %s, v72" % s(sT))
E("v_lshl_add_u32 %s, v73, 4, v72" % v(vX)); E("v_xor_b32 v73, 4, v73"); E("v_lshl_add_u32 v73, v73, 4, v72")
E("v_add_u32 %s, 6144, v73" % v(vX + 1)); E("v_add_u32 %s, 12288, %s" % (v(vX + 2), v(vX))); E("v_add_u32 %s, 18432, v73" % v(vX + 3))
E("v_and_b32 v72, 3, v64"); E("v_lshl_add_u32 v72, v67, 3, v72"); E("v_mul_u32_u24 v72, 3584, v72")
E("v_lshlrev_b32 v73, 1, v66"); E("v_xor_b32 v74, v73, v65")
E("s_mul_i32 %s, %s, %d" % (s(sT), s(sW), 16 * 3584)); E("s_mul_i32 %s, %s, 896" % (s(sT + 1), s(sJ4)))
E("s_add_u32 %s, %s, %s" % (s(sT), s(sT), s(sT + 1)))
E("s_lshl_b32 %s, %s, 7" % (s(sT + 2), s(sLA))); E("s_add_u32 %s, %s, %s" % (s(sT + 2), s(sT + 2), s(sT)))
E("s_lshl_b32 %s, %s, 7" % (s(sT + 3), s(sLB))); E("s_add_u32 %s, %s, %s" % (s(sT + 3), s(sT + 3), s(sT)))
E("s_cmp_eq_u32 %s, 2" % s(sJ)); E("s_cselect_b32 %s, 4, 0" % s(sT + 4))
E("v_lshl_add_u32 v73, v74, 4, v72"); E("v_add_u32 %s, %s, v73" % (v(vW1), s(sT + 2)))
E("v_xor_b32 v73, %s, v74" % s(sT + 4)); E("v_lshl_add_u32 v73, v73, 4, v72"); E("v_add_u32 %s, %s, v73" % (v(vW1 + 2), s(sT + 3)))
E("v_add_u32 %s, %d, %s" % (v(vW1 + 1), 4 * 3584 - 1024, v(vW1))); E("v_add_u32 %s, %d, %s" % (v(vW1 + 3), 4 * 3584 - 1024, v(vW1 + 2)))
E("s_lshl_b32 %s, %s, 6" % (s(sT), s(sI))); E("s_cmp_eq_u32 %s, 2" % s(sW)); E("s_cselect_b32 %s, %s, 0x%x" % (s(sT), s(sT), OOB))
E("v_lshl_add_u32 v72, v66, 4, %s" % s(sT)); E("v_cmp_eq_u32 vcc, 12, v71"); E("s_lshr_b32 %s, %s, 1" % (s(sT + 1), s(sQ)))
E("v_mov_b32 v73, 0x%x" % OOB); E("s_add_u32 m0, %s, %d" % (s(sT + 1), STG))
E("v_cndmask_b32 %s, v73, v72, vcc" % v(vG))
E("s_mov_b32 %s, %d" % (s(sSO), 16 * 2688 - 1024))
G.wait(lg="all")
E("s_mov_b64 %s, %s" % (s(SWQ, 2), s(KA + 2, 2))); E("s_mov_b64 %s, %s" % (s(SX, 2), s(KA, 2))); E("s_mov_b64 %s, %s" % (s(SW1, 2), s(KA + 8, 2)))
E("buffer_load_dwordx4 %s, %s, 0 offen lds" % (v(vR), s(SWQ, 4)), "rp")
E("buffer_load_dwordx4 %s, %s, %s offen offset:1024 lds" % (v(vR), s(SWQ, 4), s(sSO)), "rp")
E("s_mov_b64 %s, %s" % (s(SGW, 2), s(KA + 14, 2))); E("s_mov_b64 %s, %s" % (s(SB1, 2), s(KA + 10, 2)))
def stage_dma(st):
    it = []
    tag = "st%d" % st
    it.append("s_add_u32 m0, %s, %d" % (s(sQ), U(st % 4)))
    so = "0"
    if st: it.append("s_movk_i32 %s, %d" % (s(sSO), 128 * st)); so = s(sSO)
    else: it.append("s_nop 0")
    for u in range(4): it.append(("buffer_load_dwordx4 %s, %s, %s offen offset:%d lds" % (v(vX + u), s(SX, 4), so, 1024 * u), tag))
    so = "0"
    for line in range(2):
        it.append("s_add_u32 m0, %s, %d" % (s(sQ), U(4 + st % 4) + 2048 * line))
        if st and line == 0: it.append("s_mov_b32 %s, %d" % (s(sSO2), 64 * 3584 * st)); so = s(sSO2)
        else: it.append("s_nop 0")
        for rd in range(2): it.append(("buffer_load_dwordx4 %s, %s, %s offen offset:%d lds" % (v(vW1 + 2 * line + rd), s(SW1, 4), so, 1024 * rd), tag))
    return it
G.run(stage_dma(0))
E("buffer_load_dwordx4 v[80:83], %s, %s, 0 offen" % (v(vG), s(SGW, 4)), "gw")
E("s_mul_i32 %s, %s, 896" % (s(sT), s(sJ4)))
E("s_lshl_b32 %s, %s, 7" % (s(sT + 1), s(sLA))); E("s_add_u32 %s, %s, %s" % (s(sT + 1), s(sT + 1), s(sT)))
E("s_lshl_b32 %s, %s, 7" % (s(sT + 2), s(sLB))); E("s_add_u32 %s, %s, %s" % (s(sT + 2), s(sT + 2), s(sT)))
E("s_lshl_b32 %s, %s, 4" % (s(sT + 4), s(sT + 4))); E("s_add_u32 %s, %s, %s" % (s(sT + 2), s(sT + 2), s(sT + 4)))
E("v_lshl_add_u32 %s, v66, 3, %s" % (v(vBa), s(sT + 1))); E("v_lshl_add_u32 %s, v66, 3, %s" % (v(vBb), s(sT + 2)))
for b in range(4):
    for t in range(2):
        E("buffer_load_dwordx2 %s, %s, %s, 0 offen offset:%d" % (v(bias(b, t) + 2, 2), v(vBa if b < 2 else vBb), s(SB1, 4), 64 * (b & 1) + 32 * t), "bias")
E("v_mov_b32 %s, 0" % v(vT))
E("buffer_load_dwordx2 %s, %s, %s, 0 offen" % (v(vN, 2), v(vT), s(SWS, 4)), "nonce")
for st in (1, 2, 3): G.run(stage_dma(st))
E("s_mov_b64 %s, %s" % (s(SW2, 2), s(KA + 12, 2))); E("s_mov_b64 %s, %s" % (s(SWO, 2), s(KA + 4, 2)))
E("s_lshr_b32 %s, %s, 1" % (s(sCS), s(sH))); E("s_and_b32 %s, %s, 1" % (s(sR), s(sH)))
E("s_cmp_eq_u32 %s, 7" % s(sCS))
E("s_cselect_b32 %s, 0, 1605632" % s(SW2 + 2)); E("s_cselect_b32 %s, 0, 401408" % s(SWO + 2))
E("s_mov_b32 %s, 0x20000" % s(SW2 + 3)); E("s_mov_b32 %s, 0x20000" % s(SWO + 3))
E("s_mov_b32 %s, 1835008" % s(SOUT + 2)); E("s_mov_b32 %s, 0x20000" % s(SOUT + 3))
if STAMPS: E("s_mov_b64 %s, s[100:101]" % s(KA, 2)); nst[0] = 1
E("s_mov_b32 %s, %s" % (s(sMC), fbits(LOG2E))); E("s_mov_b32 %s, %s" % (s(sMC + 1), fbits(0.5 ** 0.5)))
E("s_mov_b32 %s, %s" % (s(sPC), fbits(LOG2E))); E("s_mov_b32 %s, %s" % (s(sPC + 1), fbits(-1e-6 * LOG2E)))
E("s_mov_b32 %s, %s" % (s(sE6), fbits(1e-6)))
E("s_mov_b32 %s, 0xf000f000" % s(sM12)); E("s_mov_b32 %s, 0xf000f000" % s(sM12 + 1))
E("s_mov_b32 %s, 0" % s(sM48)); E("s_mov_b32 %s, 0xffff0000" % s(sM48 + 1))
E("s_mov_b32 %s, 200000" % s(sCNT))
E("v_lshlrev_b32 %s, 4, v1" % v(vL16)); E("v_add_u32 %s, 65536, %s" % (v(vL16 + 1), v(vL16))); E("v_add_u32 %s, 65536, %s" % (v(vL16 + 2), v(vL16 + 1)))
E("s_lshr_b32 %s, %s, 1" % (s(sT), s(sQ))); E("s_add_u32 %s, %s, %d" % (s(sT), s(sT), STG))
E("v_lshl_add_u32 v72, v67, 10, %s" % s(sT)); E("v_lshl_add_u32 v72, v70, 8, v72"); E("v_lshl_add_u32 v72, v68, 6, v72"); E("v_lshl_add_u32 v72, v69, 3, v72")
E("v_lshl_add_u32 %s, v70, 5, v72" % v(vRr)); E("v_xor_b32 %s, 32, %s" % (v(vRr + 1), v(vRr)))
E("s_mul_i32 %s, %s, 86016" % (s(sT), s(sH))); E("s_add_u32 %s, %s, 0x%x" % (s(sT), s(sT), PWB))
E("v_add_u32 %s, %s, %s" % (v(vPW), s(sT), v(vL16)))
E("s_lshl_b32 %s, %s, 12" % (s(sT + 1), s(sI))); E("s_lshr_b32 %s, %s, 1" % (s(sT + 2), s(sQ))); E("s_add_u32 %s, %s, %s" % (s(sT + 1), s(sT + 1), s(sT + 2)))
E("s_lshl_b32 %s, %s, 11" % (s(sT + 2), s(sI))); E("s_add_u32 %s, %s, 57344" % (s(sT + 2), s(sT + 2)))
E("s_cmp_eq_u32 %s, 2" % s(sW)); E("s_cselect_b32 %s, %s, %s" % (s(sT + 1), s(sT + 2), s(sT + 1)))
E("s_cmp_eq_u32 %s, 3" % s(sW)); E("s_cselect_b32 %s, 0x%x, %s" % (s(sT + 1), OOB, s(sT + 1)))
E("s_cmp_ge_u32 %s, 14" % s(sI)); E("s_cselect_b32 %s, 0x%x, %s" % (s(sT + 1), OOB, s(sT + 1)))
E("v_add_u32 %s, %s, %s" % (v(vP), s(sT + 1), v(vPW)))
E("v_lshrrev_b32 v72, 1, v71"); E("v_xor_b32 v72, v72, v66"); E("v_lshl_add_u32 v73, v71, 7, %s" % s(sQ))
E("v_lshl_add_u32 %s, v72, 4, v73" % v(vXr)); E("v_xor_b32 %s, 64, %s" % (v(vXr + 1), v(vXr)))
E("v_bfe_u32 v72, v1, 2, 3"); E("v_lshlrev_b32 v75, 7, v72"); E("v_lshl_add_u32 v75, v69, 3, v75")
E("v_and_b32 v72, 3, v64"); E("v_lshl_add_u32 v75, v72, 5, v75")
E("v_lshl_add_u32 v72, v67, 12, v75"); E("v_add_u32 %s, 65536, v72" % v(vW1r))
for t in range(1, 4): E("v_xor_b32 %s, %d, %s" % (v(vW1r + t), 32 * t, v(vW1r)))
E("s_lshl4_add_u32 %s, %s, %s" % (s(sT), s(sI), s(sH))); E("s_lshl4_add_u32 %s, %s, %s" % (s(sT + 1), s(sT), s(sW)))
E("s_lshl_b32 %s, %s, 3" % (s(sT + 1), s(sT + 1))); E("s_add_u32 %s, %s, %d" % (s(sT + 1), s(sT + 1), FL))
E("v_mov_b32 v72, %s" % s(sT + 1)); E("v_cmp_eq_u32 vcc, 0, v1"); E("v_mov_b32 v73, 0x%x" % OOB)
E("s_nop 0"); E("v_cndmask_b32 %s, v73, v72, vcc" % v(vFW))
stamp("prerp")
G.wait(vm="rp")
stamp("rp")
for t in range(2):
    for rd in range(2): E("ds_read_b64_tr_b16 %s, %s offset:%d" % (v(84 + 4 * t + 2 * rd, 2), v(vRr + t), 512 * rd))
for b in range(4):
    for t in range(2):
        q = bias(b, t)
        E("v_lshlrev_b32 %s, 16, %s" % (v(q), v(q + 2))); E("v_and_b32 %s, 0xffff0000, %s" % (v(q + 1), v(q + 2)))
        E("v_lshlrev_b32 %s, 16, %s" % (v(q + 2), v(q + 3))); E("v_and_b32 %s, 0xffff0000, %s" % (v(q + 3), v(q + 3)))
for k in range(4): E("v_cndmask_b32_e64 %s, %s, %s, %s" % (v(88 + k), v(88 + k), v(80 + k), s(sM12, 2)))
E("buffer_store_dwordx4 v[84:87], %s, %s, 0 offen sc1" % (v(vP), s(SWS, 4)), "pw")
E("buffer_store_dwordx4 v[88:91], %s, %s, 0 offen offset:1024 sc1" % (v(vP), s(SWS, 4)), "pw")
stamp("pwst")
E("v_add_co_u32 %s, vcc, 0x7f4a7c15, %s" % (v(vN), v(vN)))
E("v_mov_b32 v72, 0x9e3779b9"); E("s_nop 0")
E("v_addc_co_u32 %s, vcc, %s, v72, vcc" % (v(vN + 1), v(vN + 1)))
late = []
L_ = late.append
L_("s_mul_i32 %s, %s, %d" % (s(sT), s(sI), 72 * 8192)); L_("s_add_u32 %s, %s, 0x%x" % (s(sT), s(sT), ACTB))
L_("s_lshr_b32 %s, %s, 1" % (s(sT + 1), s(sQ))); L_("s_add_u32 %s, %s, %s" % (s(sT + 1), s(sT + 1), s(sT)))
L_("v_add_u32 %s, %s, %s" % (v(vA), s(sT + 1), v(vL16)))
L_("s_lshl_b32 %s, %s, 12" % (s(sT + 1), s(sR))); L_("s_add_u32 %s, %s, %s" % (s(sT + 1), s(sT + 1), s(sT)))
L_("v_add_u32 %s, %s, %s" % (v(vAL), s(sT + 1), v(vL16)))
L_("s_mul_i32 %s, %s, 14" % (s(sT), s(sJ4)))
L_("s_lshl1_add_u32 %s, %s, %s" % (s(sT + 1), s(sLA), s(sT))); L_("s_lshl_b32 %s, %s, 13" % (s(sKA), s(sT + 1))); L_("s_add_u32 %s, %s, 8192" % (s(sKA + 1), s(sKA)))
L_("s_lshl1_add_u32 %s, %s, %s" % (s(sT + 1), s(sLB), s(sT))); L_("s_lshl_b32 %s, %s, 13" % (s(sKA + 2), s(sT + 1))); L_("s_add_u32 %s, %s, 8192" % (s(sKA + 3), s(sKA + 2)))
L_("s_cmp_eq_u32 %s, 2" % s(sJ)); L_("s_cselect_b32 %s, %s, %s" % (s(sKA + 2), s(sKA + 3), s(sKA + 2)))
L_("s_cselect_b32 %s, 0x%x, %s" % (s(sKA + 3), OOB, s(sKA + 3)))
L_("s_cmp_eq_u32 %s, 1" % s(sJ)); L_("s_cselect_b32 %s, 0x%x, %s" % (s(sKA + 3), OOB, s(sKA + 3)))
L_("s_mul_i32 %s, %s, %d" % (s(sW2w), s(sW), 14 * 28672)); L_("s_mul_i32 %s, %s, %d" % (s(sWOw), s(sW), 112 * 896))
L_("s_mul_i32 %s, %s, %d" % (s(sAw), s(sW), 14 * 8192)); L_("s_lshl_b32 %s, %s, 15" % (s(sAo), s(sW))); L_("s_add_u32 %s, %s, %d" % (s(sAo), s(sAo), 56 * 8192))
L_("v_lshrrev_b32 v72, 2, v1"); L_("s_lshl_b32 %s, %s, 7" % (s(sT), s(sH))); L_("s_add_u32 %s, %s, %d" % (s(sT), s(sT), FL))
L_("v_lshl_add_u32 v72, v72, 11, %s" % s(sT)); L_("v_lshl_add_u32 %s, v69, 3, v72" % v(vP16))
L_("s_lshl2_add_u32 %s, %s, %s" % (s(sT), s(sI), s(sW))); L_("s_lshl_b32 %s, %s, 9" % (s(sT), s(sT)))
L_("s_lshl4_add_u32 %s, %s, %s" % (s(sT), s(sR), s(sT))); L_("s_add_u32 %s, %s, %d" % (s(sT), s(sT), FL + 2 * 32768))
L_("v_min_u32 v72, 4, v64"); L_("v_lshl_add_u32 v72, v72, 15, %s" % s(sT)); L_("v_bfe_u32 v73, v1, 1, 2"); L_("v_lshl_add_u32 v72, v73, 7, v72")
L_("v_and_b32 v73, 1, v1"); L_("v_lshl_add_u32 %s, v73, 3, v72" % v(vPA))
L_("s_lshl_b32 %s, %s, 7" % (s(sT), s(sCS))); L_("v_mul_u32_u24 v72, 896, v64"); L_("v_lshl_add_u32 v72, v74, 4, v72"); L_("v_add_u32 %s, %s, v72" % (v(vWB), s(sT)))
L_("v_add_u32 %s, %d, %s" % (v(vWB + 1), 16 * 896 - 1024, v(vWB))); L_("v_add_u32 %s, %d, %s" % (v(vWB + 2), 8 * 896 - 2048, v(vWB))); L_("v_add_u32 %s, %d, %s" % (v(vWB + 3), 24 * 896 - 3072, v(vWB)))
L_("v_lshl_add_u32 v72, v67, 11, v75"); L_("v_add_u32 %s, %s, v72" % (v(vWBr), s(sQ)))
for ct in range(1, 4): L_("v_xor_b32 %s, %d, %s" % (v(vWBr + ct), 32 * ct, v(vWBr)))
for k in range(4, 12): L_("v_add_u32 %s, 65536, %s" % (v(vWBr + k), v(vWBr + k - 4)))
L_("s_lshl2_add_u32 %s, %s, %s" % (s(sT), s(sH), s(sW))); L_("s_lshl_b32 %s, %s, 14" % (s(sT), s(sT))); L_("s_add_u32 %s, %s, 0x%x" % (s(sT), s(sT), KVB))
L_("v_add_u32 %s, %s, %s" % (v(vKVg), s(sT), v(vL16))); L_("s_lshl_b32 %s, %s, 10" % (s(sT), s(sI))); L_("v_add_u32 %s, %s, %s" % (v(vKVs), s(sT), v(vKVg)))
L_("s_lshl_b32 %s, %s, 7" % (s(sT), s(sW))); L_("s_add_u32 %s, %s, %d" % (s(sT), s(sT), MISC)); L_("v_lshl_add_u32 %s, v71, 2, %s" % (v(vGr), s(sT)))
L_("v_add_u32 v72, 512, %s" % v(vGr)); L_("v_cndmask_b32_e64 %s, v72, %s, %s" % (v(vGw), v(vGr), s(sM48, 2)))
L_("s_lshl_b32 %s, %s, 8" % (s(sT), s(sR))); L_("s_add_u32 %s, %s, %d" % (s(sT), s(sT), MISC)); L_("v_lshl_add_u32 %s, v71, 2, %s" % (v(vGr2), s(sT)))
L_("s_and_b32 %s, %s, 1" % (s(sT), s(sW))); L_("s_lshl_b32 %s, %s, 10" % (s(sT), s(sT))); L_("s_lshr_b32 %s, %s, 1" % (s(sT + 1), s(sW)))
L_("s_lshl3_add_u32 %s, %s, %s" % (s(sT), s(sT + 1), s(sT))); L_("s_add_u32 %s, %s, %d" % (s(sT), s(sT), KVF)); L_("v_add_u32 %s, %s, %s" % (v(vKVFw), s(sT), v(vL16)))
L_("s_lshr_b32 %s, %s, 2" % (s(sT), s(sQ))); L_("s_add_u32 %s, %s, %d" % (s(sT), s(sT), U(6))); L_("v_add_u32 %s, %s, %s" % (v(vSw), s(sT), v(vL16)))
L_("v_add_u32 %s, %s, %s" % (v(vFw), s(sQ), v(vL16))); L_("v_add_u32 %s, %d, %s" % (v(vSr), U(6), v(vFw)))
L_("s_lshl_b32 %s, %s, 2" % (s(sT), s(sQ))); L_("v_add_u32 %s, %s, %s" % (v(vFr), s(sT), v(vL16)))
L_("s_lshl1_add_u32 %s, %s, %s" % (s(sT), s(sI), s(sR))); L_("s_lshl2_add_u32 %s, %s, %s" % (s(sT), s(sT), s(sW))); L_("s_mul_i32 %s, %s, %d" % (s(sT), s(sT), 16 * 896))
L_("s_lshl_b32 %s, %s, 7" % (s(sT + 1), s(sCS))); L_("s_add_u32 %s, %s, %s" % (s(sT), s(sT), s(sT + 1)))
L_("v_mul_u32_u24 v72, 896, v71"); L_("v_lshl_add_u32 v72, v66, 3, v72"); L_("v_add_u32 %s, %s, v72" % (v(vO), s(sT)))
for k in range(4): L_("v_mov_b32 %s, %s" % (v(vC6 + k), s(sE6)))
G.run(late)
stamp("pro")

def wb_dma(n):
    unit = WB_UNITS[n % 9]
    it = ["s_add_u32 m0, %s, %d" % (s(sQ), U(unit))]
    if n < 14: it.append("s_add_u32 %s, %s, %d" % (s(sSO), s(sW2w), KREL[n] * 28672)); srd = SW2
    else: it.append("s_add_u32 %s, %s, %d" % (s(sSO), s(sWOw), (n - 14) * 28 * 896)); srd = SWO
    for u in range(4): it.append(("buffer_load_dwordx4 %s, %s, %s offen offset:%d lds" % (v(vWB + u), s(srd, 4), s(sSO), 1024 * u), "wb%d" % n))
    return it
def kv_lds(ks):
    return [U(0), U(4), U(1), U(5)][ks // 4] + 4096 * (ks % 4)
def q_lds(ks):
    if ks < 4: return U(5) + 8192 + 2048 * ks
    if ks < 12: return U(2) + 2048 * (ks - 4)
    return STG + 2048 * (ks - 12)
def pw_dma():
    it = []
    def grp(lds, wl, mem, wm, cnt, tag):
        if wl == 0:
            it.append("s_add_u32 m0, %s, %d" % (s(sQ), lds)); it.append("s_add_u32 %s, %s, %d" % (s(sSO), s(sQ), mem))
        else:
            it.append("s_lshr_b32 %s, %s, %d" % (s(sSO), s(sQ), wl)); it.append("s_add_u32 m0, %s, %d" % (s(sSO), lds)); it.append("s_add_u32 %s, %s, %d" % (s(sSO), s(sSO), mem))
        for k in range(cnt): it.append(("buffer_load_dwordx4 %s, %s, %s offen offset:%d sc1 lds" % (v(vPW), s(SWS, 4), s(sSO), 1024 * k), tag))
    grp(kv_lds(0), 0, 0, 0, 4, "kva"); grp(kv_lds(4), 0, 16384, 0, 4, "kva")
    grp(kv_lds(8), 0, 32768, 0, 4, "kvb"); grp(kv_lds(12), 1, 49152, 0, 2, "kvb")
    grp(q_lds(0), 1, 57344, 0, 2, "kvb"); it.append(W(lg="x")); grp(q_lds(4), 0, 57344 + 8192, 0, 4, "kvb"); grp(q_lds(12), 2, 57344 + 24576, 0, 1, "kvb")
    return it

units = []
for st in range(7):
    for kk in range(2):
        ks = 2 * st + kk
        for b in range(4):
            n = len(units)
            pre = []
            if kk == 0 and b == 0:
                pre.append(W(vm="st%d" % st))
                for k2 in range(2):
                    for rt in range(2): pre.append(("ds_read_b128 %s, %s offset:%d" % (a(xf(2 * st + k2, rt), 4), v(vXr + k2), U(st % 4) + 2048 * rt), "x"))
                pre.append(W(lg="w")); pre.append(ST("w%d" % st)); pre.append(BAR); pre.append(ST("b%d" % st))
                if st == 6: pre += [lambda: poll_check(vP16, T_PW, (1 << 64) - 1), ST("pwchk")]
            reads = [("ds_read_b64_tr_b16 %s, %s offset:%d" % (v(BUF(n) + 4 * t + 2 * rd, 2), v(vW1r + 2 * (b & 1) + t), U(st % 4) + 8192 * kk + 2048 * (b >> 1) + 1024 * rd), "w")
                     for t in range(2) for rd in range(2)]
            mf = ["%s %s, %s, %s, %s" % (MF, v(accH(b, t, rt), 4), v(BUF(n) + 4 * t, 4), a(xf(ks, rt), 4), v(bias(b, t) if ks == 0 else accH(b, t, rt), 4))
                  for t in range(2) for rt in range(2)]
            units.append(Unit(pre, reads, mf))
LA = 2
for st in range(1, 4): distribute(units, stage_dma(st + 3), 8 * st - LA, 8 * st - LA + 6)
distribute(units, [flag(T_PW, "pw")], 8 * 3 + 5, 8 * 3 + 6)
distribute(units, poll_load(vP16, T_PW) + wb_dma(0) + wb_dma(1) + wb_dma(2), 8 * 5 - LA, 8 * 5 + 5)
distribute(units, pw_dma(), 8 * 6 - LA, 8 * 7)
G.run(pipeline(units, LA))
stamp("p2")

def mish(b):
    T = 128 + 16 * (b & 1)
    H = accH(b, 0, 0)
    it = []
    for k in range(8): it.append("v_pk_fma_f32 %s, %s, %s, -0.5 op_sel_hi:[1,0,0]" % (v(T + 2 * k, 2), v(H + 2 * k, 2), s(sMC, 2)))
    for k in range(16): it.append("v_exp_f32 %s, %s" % (v(T + k), v(T + k)))
    for k in range(8): it.append("v_pk_add_f32 %s, %s, %s op_sel:[0,1] op_sel_hi:[1,1]" % (v(T + 2 * k, 2), v(T + 2 * k, 2), s(sMC, 2)))
    for k in range(8): it.append("v_pk_fma_f32 %s, %s, %s, 0.5 op_sel_hi:[1,1,0]" % (v(T + 2 * k, 2), v(T + 2 * k, 2), v(T + 2 * k, 2)))
    for k in range(16): it.append("v_rcp_f32 %s, %s" % (v(T + k), v(T + k)))
    for k in range(8): it.append("v_pk_fma_f32 %s, %s, %s, %s neg_lo:[1,0,0] neg_hi:[1,0,0]" % (v(T + 2 * k, 2), v(H + 2 * k, 2), v(T + 2 * k, 2), v(H + 2 * k, 2)))
    for rt in range(2):
        for t in range(2):
            for k in range(2):
                src = T + (t * 2 + rt) * 4 + 2 * k
                it.append("v_cvt_pk_bf16_f32 %s, %s, %s" % (v(accH(b, 0, rt) + 2 * t + k), v(src), v(src + 1)))
        it.append(("buffer_store_dwordx4 %s, %s, %s, %s offen offset:%d sc1" % (v(accH(b, 0, rt), 4), v(vA), s(SWS, 4), s(sKA + b), 1024 * rt), "act%d" % b))
    return it
G.run(mish(0)); G.run(mish(1))
stamp("mish01")
def lds_win(addr): return vL16 + addr // 65536, addr % 65536
units = []
for ks in range(14):
    for sec in range(2):
        n = len(units)
        pre = []
        if sec == 0 and ks == 0: pre = [W(vm="kva"), W(lg="all"), BAR, ST("b7a")]
        if sec == 0 and ks == 8: pre = [W(vm="kvb", lg="w"), BAR, ST("b7b")]
        reads = []
        for t in range(2):
            r, o = lds_win(kv_lds(ks) + 2048 * sec + 1024 * t)
            reads.append(("ds_read_b128 %s, %s offset:%d" % (v(BUF(n) + 4 * t, 4), v(r), o), "w"))
        acc = accV if sec else accK
        mf = []
        for t in range(2):
            for rt in range(2):
                c = v(acc(t, rt), 4) if ks else ("0" if sec else v(vC6, 4))
                mf.append("%s %s, %s, %s, %s" % (MF, v(acc(t, rt), 4), a(xf(ks, rt), 4), v(BUF(n) + 4 * t, 4), c))
        units.append(Unit(pre, reads, mf))
distribute(units, [flag(T_ACT, "act0")] + mish(2) + [flag(T_ACT + 1, "act1")], 0, 14)
distribute(units, wb_dma(3) + wb_dma(4) + mish(3) + [flag(T_ACT + 2, "act2")], 14, 28)
G.run(pipeline(units, LA))
stamp("kv")
def phi(A, T):
    it = []
    for k in range(8): it.append("v_pk_fma_f32 %s, %s, %s, %s op_sel:[0,0,1] op_sel_hi:[1,0,1]" % (v(T + 2 * k, 2), v(A + 2 * k, 2), s(sPC, 2), s(sPC, 2)))
    for k in range(16): it.append("v_exp_f32_e64 %s, %s clamp" % (v(T + k), v(T + k)))
    for k in range(16): it.append("v_max_f32 %s, %s, %s" % (v(A + k), s(sE6), v(A + k)))
    for k in range(8): it.append("v_pk_add_f32 %s, %s, %s" % (v(A + 2 * k, 2), v(A + 2 * k, 2), v(T + 2 * k, 2)))
    return it
def pack(d, lo, hi):
    return ["v_cvt_pk_bf16_f32 %s, %s, %s" % (v(d), v(lo), v(lo + 1)), "v_cvt_pk_bf16_f32 %s, %s, %s" % (v(d + 1), v(lo + 2), v(lo + 3)),
            "v_cvt_pk_bf16_f32 %s, %s, %s" % (v(d + 2), v(hi), v(hi + 1)), "v_cvt_pk_bf16_f32 %s, %s, %s" % (v(d + 3), v(hi + 2), v(hi + 3))]
G.run(phi(accK(0, 0), 64))
for dt in range(2): G.run(pack(accV(dt, 0), accV(dt, 0), accV(dt, 1)))
E("v_mov_b32 %s, 0x3f803f80" % v(vT))
for dt in range(2): G.run(pack(accK(dt, 0), accK(dt, 0), accK(dt, 1)))
for k in range(4): E("v_cndmask_b32_e64 %s, %s, %s, %s" % (v(accV(1, 0) + k), v(accV(1, 0) + k), v(vT), s(sM12, 2)))
KVT = [accK(0, 1), accK(1, 1), accV(0, 1), accV(1, 1)]
for dt in range(2):
    for et in range(2): E("%s %s, %s, %s, 0" % (MF, v(KVT[2 * dt + et], 4), v(accK(dt, 0), 4), v(accV(et, 0), 4)))
for T in range(4): E("ds_write_b128 %s, %s offset:%d" % (v(vSw), v(KVT[T], 4), 4096 * T))
G.wait(lg="all"); E(BAR)
for k in range(4): E("ds_read_b128 %s, %s offset:%d" % (v(64 + 4 * k, 4), v(vSr), 1024 * k))
stamp("bk1")
G.run(wb_dma(5))
for k in range(2): E("v_pk_add_f32 %s, %s, %s" % (v(64 + 2 * k, 2), v(64 + 2 * k, 2), v(68 + 2 * k, 2)))
for k in range(2): E("v_pk_add_f32 %s, %s, %s" % (v(72 + 2 * k, 2), v(72 + 2 * k, 2), v(76 + 2 * k, 2)))
for k in range(2): E("v_pk_add_f32 %s, %s, %s" % (v(64 + 2 * k, 2), v(64 + 2 * k, 2), v(72 + 2 * k, 2)))
E("buffer_store_dwordx4 v[64:67], %s, %s, 0 offen sc1" % (v(vKVs), s(SWS, 4)), "kvp")
units = []
for ks in range(14):
    n = len(units)
    reads = []
    for t in range(2):
        r, o = lds_win(q_lds(ks) + 1024 * t)
        reads.append(("ds_read_b128 %s, %s offset:%d" % (v(BUF(n) + 4 * t, 4), v(r), o), "w"))
    mf = ["%s %s, %s, %s, %s" % (MF, v(accQ(t, rt), 4), v(BUF(n) + 4 * t, 4), a(xf(ks, rt), 4), v(accQ(t, rt), 4) if ks else v(vC6, 4)) for t in range(2) for rt in range(2)]
    units.append(Unit([], reads, mf))
distribute(units, [flag(T_ACT + 3, "act3")], 2, 3)
distribute(units, [flag(T_KV, "kvp")] + poll_load(vPA, 0), 10, 12)
G.run(pipeline(units, LA))
G.wait(lg="all"); E(BAR)
G.run(wb_dma(6) + wb_dma(7) + wb_dma(8))
stamp("bq")

ph = phi(accQ(0, 0), 64)
gate = ["v_exp_f32_e64 %s, -%s" % (v(80 + rt), v(64 + (2 + rt) * 4)) for rt in range(2)]
qe = ph[:8] + gate + ph[8:12] + ["v_add_f32 %s, 1.0, %s" % (v(80 + rt), v(80 + rt)) for rt in range(2)] + ph[12:16]
qe += ["v_rcp_f32 %s, %s" % (v(80 + rt), v(80 + rt)) for rt in range(2)] + ph[16:20]
qe += [("ds_write_b32 %s, %s offset:%d" % (v(vGw), v(80 + rt), 64 * rt), "g") for rt in range(2)] + ph[20:]
for rt in range(2): qe += pack(accQ(0, rt), accQ(0, rt), accQ(1, rt))
for rt in range(2):
    for k in range(2): qe.append("v_cndmask_b32_e64 %s, %s, 0, %s" % (v(accQ(0, rt) + 2 + k), v(accQ(0, rt) + 2 + k), s(sM48, 2)))
vGq = [accQ(1, 0), accQ(1, 1)]
qe += ["ds_read_b32 %s, %s offset:%d" % (v(vGq[rt]), v(vGr), 64 * rt) for rt in range(2)]

def kv_gather():
    it = []
    for k in range(16):
        if k % 4 == 0 and k: it.append("s_movk_i32 %s, %d" % (s(sSO2), 1024 * k))
        it.append(("buffer_load_dwordx4 %s, %s, %s, %s offen offset:%d sc1" % (v(128 + 4 * k, 4), v(vKVg), s(SWS, 4), s(sSO2) if k >= 4 else "0", 1024 * (k % 4)), "kvg"))
    return it
def kv_sum():
    it = []
    step = 1
    while step < 16:
        for k in range(0, 16, 2 * step):
            for h2 in range(2): it.append("v_pk_add_f32 %s, %s, %s" % (v(128 + 4 * k + 2 * h2, 2), v(128 + 4 * k + 2 * h2, 2), v(128 + 4 * (k + step) + 2 * h2, 2)))
        step *= 2
    it += ["v_cvt_pk_bf16_f32 v128, v128, v129", "v_cvt_pk_bf16_f32 v129, v130, v131", ("ds_write_b64 %s, v[128:129]" % v(vKVFw), "kvf")]
    return it
def o_part1():
    it = [W(lg="kvf"), BAR]
    r, o = lds_win(KVF)
    it += ["ds_read_b128 %s, %s offset:%d" % (v(vF0, 4), v(r), o), "ds_read_b128 %s, %s offset:%d" % (v(vF1, 4), v(r), o + 1024)]
    return it
def o_part2():
    it = ["v_mov_b32_dpp %s, %s row_newbcast:12 row_mask:0xf bank_mask:0xf" % (v(vZ + k), v(vF1 + k)) for k in range(4)]
    for rt in range(2):
        it.append("%s %s, %s, %s, 0" % (MF, v(128 + 12 * rt, 4), v(vF0, 4), v(accQ(0, rt), 4)))
        it.append("%s %s, %s, %s, 0" % (MF, v(132 + 12 * rt, 4), v(vF1, 4), v(accQ(0, rt), 4)))
    for rt in range(2): it.append("%s %s, %s, %s, 0" % (MF, v(136 + 12 * rt, 4), v(vZ, 4), v(accQ(0, rt), 4)))
    return it
def o_part3():
    it = []
    D = lambda rt: 136 + 12 * rt
    for rt in range(2): it.append("v_add_f32 %s, %s, %s" % (v(D(rt)), s(sE6), v(D(rt))))
    for rt in range(2): it.append("v_rcp_f32 %s, %s" % (v(D(rt)), v(D(rt))))
    it.append("s_lshl_b32 %s, %s, 13" % (s(sSO2), s(sH)))
    for rt in range(2): it.append("v_mul_f32 %s, %s, %s" % (v(D(rt)), v(D(rt)), v(vGq[rt])))
    it.append("s_add_u32 %s, %s, %d" % (s(sSO2), s(sSO2), 56 * 8192))
    for rt in range(2): it.append("v_cndmask_b32_e64 %s, %s, 0, %s" % (v(D(rt) + 1), v(D(rt)), s(sM48, 2)))
    for rt in range(2):
        for k in range(2): it.append("v_pk_mul_f32 %s, %s, %s op_sel_hi:[1,0]" % (v(128 + 12 * rt + 2 * k, 2), v(128 + 12 * rt + 2 * k, 2), v(D(rt), 2)))
        for k in range(2): it.append("v_pk_mul_f32 %s, %s, %s op_sel:[0,1] op_sel_hi:[1,1]" % (v(132 + 12 * rt + 2 * k, 2), v(132 + 12 * rt + 2 * k, 2), v(D(rt), 2)))
    for rt in range(2):
        it += pack(128 + 12 * rt, 128 + 12 * rt, 132 + 12 * rt)
        it.append(("buffer_store_dwordx4 %s, %s, %s, %s offen offset:%d sc1" % (v(128 + 12 * rt, 4), v(vA), s(SWS, 4), s(sSO2), 1024 * rt), "o"))
    return it
def act_load(n):
    it = []
    if n < 14: it.append("s_add_u32 %s, %s, %d" % (s(sSO2), s(sAw), KREL[n] * 8192))
    else: it.append("s_add_u32 %s, %s, %d" % (s(sSO2), s(sAo), (n - 14) * 8192))
    for rt in range(4): it.append(("buffer_load_dwordx4 %s, %s, %s, %s offen offset:%d sc1" % (a(actreg(n) + 4 * rt, 4), v(vAL), s(SWS, 4), s(sSO2), 1024 * rt), "al%d" % n))
    return it

E("s_cmp_eq_u32 %s, 7" % s(sCS)); E("s_cbranch_scc1 L_idle")
saved = copy.deepcopy((G.n, G.w, G.cread, G.stdata, G.vm, G.lg, G.smem, G.smem_regs))
poll_check(vPA, 0, 0xffff)
stamp("a01chk")
for n in range(8): G.run(act_load(n))
stamp("a01ld")
G.run(poll_load(vP16, T_KV))
G.run(qe)
stamp("qe")
units = []
for n in range(18):
    unit = WB_UNITS[n % 9]
    for cp in range(2):
        m = len(units)
        pre = [ST("k%d" % n), W(vm="wb%d" % n)] if cp == 0 else []
        reads = [("ds_read_b64_tr_b16 %s, %s offset:%d" % (v(BUF(m) + 4 * t + 2 * rd, 2), v(vWBr + 4 * (unit // 4) + 2 * cp + t), U(unit % 4) + 1024 * rd), "w%d" % n)
                 for t in range(2) for rd in range(2)]
        mf = ["%s %s, %s, %s, %s" % (MF, v(accB(rt, 2 * cp + t), 4), v(BUF(m) + 4 * t, 4), a(actreg(n) + 4 * rt, 4), v(accB(rt, 2 * cp + t), 4) if n else "0")
              for t in range(2) for rt in range(4)]
        units.append(Unit(pre, reads, mf))
LB = 2
for n in range(9): units[2 * n + 1].fill += [W(lg="w%d" % n)] + wb_dma(n + 9)
def at(n, items, span=2): distribute(units, items, 2 * n, 2 * n + span)
at(1, [lambda: poll_check(vP16, T_KV, (1 << 64) - 1)] + kv_gather() + poll_load(vPA, 0), 2)
at(3, [lambda: poll_check(vPA, 0, 0xffff0000)] + sum([act_load(n) for n in range(8, 14)], []), 4)
at(5, kv_sum() + o_part1(), 2)
at(6, o_part2(), 1)
at(7, o_part3(), 2)
at(7, ["ds_read_b32 %s, %s offset:%d" % (v(vOG + rt), v(vGr2), 64 * rt) for rt in range(4)], 1)
at(9, [flag(T_O, "o")], 1)
at(9, ["v_sub_f32 %s, 1.0, %s" % (v(vOG + rt), v(vOG + rt)) for rt in range(4)], 1)
at(11, poll_load(vPA, 0), 1)
at(12, [lambda: poll_check(vPA, 0, 0xff00000000)] + sum([act_load(n) for n in range(14, 18)], []), 2)
seq = pipeline(units, LB)
first = units[28].mf[0]
idx = max(k for k, it in enumerate(seq) if it is first)
scale = []
for rt in range(4):
    for k in range(8):
        r = accB(rt, 0) + 2 * k
        scale.append("v_pk_mul_f32 %s, %s, %s %s" % (v(r, 2), v(r, 2), v(vOG + (rt & ~1), 2), "op_sel:[0,1] op_sel_hi:[1,1]" if rt & 1 else "op_sel_hi:[1,0]"))
seq[idx:idx] = scale
G.run(seq)
stamp("pb")
for rt in range(4):
    for ct in range(4): E("ds_write_b128 %s, %s offset:%d" % (v(vFw), v(accB(rt, ct), 4), U(rt) + 1024 * ct))
G.wait(lg="all"); E(BAR)
for ct in range(4):
    for k in range(4): E("ds_read_b128 %s, %s offset:%d" % (v(128 + 16 * ct + 4 * k, 4), v(vFr), 4096 * k + 1024 * ct))
for ct in range(4):
    b = 128 + 16 * ct
    for k in range(2): E("v_pk_add_f32 %s, %s, %s" % (v(b + 2 * k, 2), v(b + 2 * k, 2), v(b + 4 + 2 * k, 2)))
    for k in range(2): E("v_pk_add_f32 %s, %s, %s" % (v(b + 8 + 2 * k, 2), v(b + 8 + 2 * k, 2), v(b + 12 + 2 * k, 2)))
    for k in range(2): E("v_pk_add_f32 %s, %s, %s" % (v(b + 2 * k, 2), v(b + 2 * k, 2), v(b + 8 + 2 * k, 2)))
    E("v_cvt_pk_bf16_f32 %s, %s, %s" % (v(b), v(b), v(b + 1))); E("v_cvt_pk_bf16_f32 %s, %s, %s" % (v(b + 1), v(b + 2), v(b + 3)))
    E("buffer_store_dwordx2 %s, %s, %s, 0 offen offset:%d" % (v(b, 2), v(vO), s(SOUT, 4), 32 * ct), "out")
E("s_cmp_lg_u32 s2, 0"); E("s_cbranch_scc1 L_fin")
E("v_mov_b32 %s, 0" % v(vT))
E("buffer_store_dwordx2 %s, %s, %s, 0 offen sc1" % (v(vN, 2), v(vT), s(SWS, 4)))
G.label("L_fin")
def dump_stamps():
    if not STAMPS: return
    G.raw("  s_memrealtime s[100:101]\n  s_waitcnt vmcnt(0) lgkmcnt(0)\n  s_memrealtime s[4:5]\n  s_waitcnt lgkmcnt(0)")
    G.raw("  s_lshl2_add_u32 s3, s2, %s\n  s_mul_i32 s3, s3, 80\n  s_add_u32 s3, s3, 0x%x\n  v_mov_b32 v2, s3" % (s(sW), STB))
    regs = [KA + 2 * k for k in range(8)] + [100, 4]
    for k, r in enumerate(regs):
        G.raw("  v_mov_b32 v4, s%d\n  v_mov_b32 v5, s%d\n  buffer_store_dwordx2 v[4:5], v2, %s, 0 offen offset:%d\n  s_nop 1" % (r, r + 1, s(SWS, 4), 8 * k))
dump_stamps()
G.label("L_end")
G.raw("  s_endpgm")
G.label("L_idle")
(G.n, G.w, G.cread, G.stdata, G.vm, G.lg, G.smem, G.smem_regs) = saved
G.run(qe)
G.run(poll_load(vP16, T_KV)); poll_check(vP16, T_KV, (1 << 64) - 1)
G.run(kv_gather()); G.run(kv_sum()); G.run(o_part1()); G.run(o_part2()); G.run(o_part3()); flag(T_O, "o")()
if STAMPS:
    pass
dump_stamps()
G.raw("  s_endpgm")
emit_spins()

hdr = open("cdna_kernels/%s.s.ref" % NAME).read().split("; Override launch geometry")[0]
txt = hdr + """; @launch grid=(256,1,1) block=(256,1,1) lds=163840
.amdgcn_target "amdgcn-amd-amdhsa--gfx950"
.text
.globl {N}_kernel
.p2align 8
.type {N}_kernel,@function
{N}_kernel:
{B}.section .rodata,"a"
.p2align 6
.amdhsa_kernel {N}_kernel
  .amdhsa_next_free_vgpr 512
  .amdhsa_next_free_sgpr 102
  .amdhsa_accum_offset 256
  .amdhsa_group_segment_fixed_size 0
  .amdhsa_kernarg_size 88
  .amdhsa_user_sgpr_count 2
  .amdhsa_user_sgpr_kernarg_segment_ptr 1
  .amdhsa_system_sgpr_workgroup_id_x 1
.end_amdhsa_kernel
""".format(N=NAME, B=G.text())
if "--cyc" in sys.argv: txt = txt.replace("s_memrealtime", "s_memtime")
open(OUTF, "w").write(txt)
print("stats", G.stats, "nops", G.nops, "maxvm", G.maxvm, "stamps", stn, file=sys.stderr)
open(OUTF + ".names", "w").write(" ".join(stn + ["-"] * (8 - len(stn)) + ["end", "drain"]))
```

```python
from asmgen import Ins
class Mark:
    def __init__(s, name): s.name = name
class Need:
    def __init__(s, tag): s.tag = tag
class Issued:
    def __init__(s, tag): s.tag = tag
class NeedEv:
    def __init__(s, ev): s.ev = ev
class Call:
    def __init__(s, f, cost=0): s.f, s.cost = f, cost
class Atom:
    def __init__(s, items): s.items = items
class VG:
    def __init__(s, items, tag, after=(), lat=700, svc=64, ta=64, done_tag=None, at=None, mark=None):
        s.items, s.tag, s.after, s.lat, s.svc, s.ta, s.done_tag, s.at, s.mark = list(items), tag, tuple(after), lat, svc, ta, done_tag, at, mark
        s.pos = 0
class Check:
    def __init__(s, ptag, fn, ev): s.ptag, s.fn, s.ev = ptag, fn, ev
def text(it): return it[0] if isinstance(it, tuple) else it
def glue(items):
    out = []
    for it in items:
        if isinstance(it, str) and it.startswith(("s_cselect", "s_addc")):
            p = out.pop()
            out.append(Atom((p.items if isinstance(p, Atom) else [p]) + [it]))
        else: out.append(it)
    return out
COST = {"valu": 4, "trans": 8, "salu": 4, "dsr": 4, "dsw": 8, "ctl": 4, "smem": 4, "dma": 4, "vld": 4, "vst": 4}
class Sched:
    def __init__(s, G, t0=0, cap=16):
        s.G, s.t, s.mf, s.ta = G, t0, 0, 0
        s.ev, s.comp, s.last = {}, {}, 0
        s.Q = [[], [], []]
        s.cur = None
        s.checks = []
        s.F = []
        s.log = []
        s.slack = 8
        s.cap = cap
        s.fl = []
        s.vlog = []
        s.slow = 1.0; s.slow_until = 0
    def adv(s, c): s.t += int(c * (s.slow if s.t < s.slow_until else 1.0))
    def mark(s, n):
        s.ev[n] = s.t; s.log.append((s.t, n))
    def elig(s, g):
        if any(e not in s.ev for e in g.after): return False
        if g.done_tag is not None and not all(s.done(d) for d in g.done_tag): return False
        if g.at is not None and not (g.at[0] in s.ev and s.ev[g.at[0]] + g.at[1] <= s.t): return False
        return True
    def done(s, tag): return tag in s.comp and not s.pending(tag) and s.comp[tag] <= s.t
    def pick(s):
        for g in s.Q[0]:
            if s.elig(g): return g
        if s.cur is not None: return s.cur
        for g in s.Q[1] + s.Q[2]:
            if s.elig(g): return g
        return None
    def free_at(s):
        t = s.ta - s.slack
        if len(s.fl) >= s.cap: t = max(t, s.fl[-s.cap])
        return t
    def emit_plain(s, it):
        if isinstance(it, Mark): s.mark(it.name); return
        if isinstance(it, Call): it.f(); s.t += it.cost; return
        if isinstance(it, Atom):
            for x in it.items: s.emit_plain(x)
            return
        I = Ins(text(it))
        if I.kind == "mfma":
            st = max(s.t, s.mf); s.t = st + 8; s.mf = st + 16
        elif I.op == "s_barrier": s.t += 40
        else: s.adv(COST[I.kind] * (3 if I.op == "ds_write_b128" else 1))
        s.G.E(text(it), it[1] if isinstance(it, tuple) else None)
    def issue(s, g):
        while True:
            it = g.items[g.pos]; g.pos += 1
            if isinstance(it, (str, tuple)) and Ins(text(it)).kind in ("dma", "vld", "vst"):
                s.t = max(s.t, s.ta - 64)
                if len(s.fl) >= s.cap: s.t = max(s.t, s.fl[-s.cap])
                s.G.E(text(it), g.tag)
                s.ta = max(s.ta, s.t) + g.ta
                s.t += 4
                s.last = max(s.last + g.svc, s.ta + g.lat); s.fl.append(s.last)
                s.vlog.append((s.t, g.tag, s.last))
                break
            s.emit_plain(it)
        while g.pos < len(g.items) and not any(isinstance(x, (str, tuple)) and Ins(text(x)).kind in ("dma", "vld", "vst") for x in g.items[g.pos:]):
            s.emit_plain(g.items[g.pos]); g.pos += 1
        if g.pos >= len(g.items):
            s.comp[g.tag] = s.last
            for q in s.Q:
                if g in q: q.remove(g)
            if s.cur is g: s.cur = None
            if g.mark: s.mark(g.mark)
        elif g not in s.Q[0]: s.cur = g
    def pending(s, tag): return [g for q in s.Q for g in q if g.tag == tag]
    def force_ev(s, e):
        if e in s.ev: return
        for c in s.checks:
            if c.ev == e:
                s.force(c.ptag); s.wait_until(s.comp[c.ptag])
                if c in s.checks: s.do_check(c)
                return
        for q in s.Q:
            for g in list(q):
                if g.mark == e: s.force(g.tag); return
        while e not in s.ev:
            assert s.F, "event %s can not be produced here" % e
            while s.try_side(): pass
            if e in s.ev: break
            s.step_F(force=True)
    def force(s, tag):
        for g in s.pending(tag):
            for e in g.after: s.force_ev(e)
            for d in (g.done_tag or ()): s.force(d); s.wait_until(s.comp[d])
            if g.at: s.force_ev(g.at[0]); s.wait_until(s.ev[g.at[0]] + g.at[1])
            if s.cur is not None and s.cur is not g and g not in s.Q[0]:
                c = s.cur
                while c.pos < len(c.items): s.issue(c)
            while g.pos < len(g.items):
                s.fill_until(s.free_at())
                s.issue(g)
    def fill_until(s, T):
        while s.t < T and s.F_ready(): s.step_F()
    def do_check(s, c):
        s.checks.remove(c); c.fn(); s.t += 24; s.mark(c.ev)
    def try_side(s):
        for c in s.checks:
            if s.done(c.ptag): s.do_check(c); return True
        if s.t >= s.free_at():
            g = s.pick()
            if g: s.issue(g); return True
        return False
    def F_ready(s):
        while s.F:
            h = s.F[0]
            if isinstance(h, Need): return s.done(h.tag)
            if isinstance(h, NeedEv): return h.ev in s.ev
            if isinstance(h, Issued): return not s.pending(h.tag)
            return True
        return False
    def step_F(s, force=False):
        h = s.F.pop(0)
        if isinstance(h, Need):
            s.force(h.tag); s.t = max(s.t, s.comp[h.tag]); s.G.wait(vm=h.tag)
        elif isinstance(h, Issued): s.force(h.tag)
        elif isinstance(h, NeedEv):
            if h.ev not in s.ev:
                F = s.F; s.F = []; s.force_ev(h.ev); s.F = F
        else: s.emit_plain(h)
    def wait_until(s, T):
        while s.t < T:
            if s.try_side(): continue
            if s.F_ready(): s.step_F(); continue
            nxt = [T]
            if s.pick(): nxt.append(max(s.t + 1, s.free_at()))
            else: nxt.append(s.t + 16)
            s.t = min(nxt)
    def run(s, M):
        for it in M:
            while s.try_side(): pass
            if isinstance(it, Need):
                s.force(it.tag); s.wait_until(s.comp[it.tag]); s.G.wait(vm=it.tag); continue
            if isinstance(it, Issued): s.force(it.tag); continue
            if isinstance(it, NeedEv): s.force_ev(it.ev); continue
            if isinstance(it, (str, tuple)) and text(it).startswith("v_mfma"):
                while s.mf > s.t + 2 and s.F_ready():
                    s.step_F()
                    while s.try_side(): pass
            s.emit_plain(it)
    def drain(s):
        while s.F:
            if s.try_side(): continue
            if s.F_ready(): s.step_F(); continue
            h = s.F[0]
            if isinstance(h, Need): s.force(h.tag); s.wait_until(s.comp[h.tag]); continue
            s.step_F(force=True)
        for q in s.Q:
            for g in list(q):
                if g.pos < len(g.items): s.force(g.tag)
```

```python
import sys, copy, struct
sys.path.insert(0, "work")
from asmgen import *
from sched3 import *
NAME = "gated_mix__linear_attn_block__dense_activation_mish__prompt"
SEL = [x[5:].split(",") for x in sys.argv if x.startswith("--st=")]
SEL = SEL[0] if SEL else []
STAMPS = bool(SEL)
OPT = dict(x[2:].split("=") for x in sys.argv if x.startswith("--") and "=" in x and not x.startswith("--st="))
def opt(k, d): return type(d)(OPT.get(k, d))
OUTF = [x for x in sys.argv[1:] if not x.startswith("--")][0]
def fbits(x): return "0x%08x" % struct.unpack("<I", struct.pack("<f", x))[0]
LOG2E = 1.4426950408889634
LAT_COLD, LAT_L2, LAT_FAB, LAT_ST = opt("cold", 1300), opt("l2", 700), opt("fab", 1400), opt("lst", 1300)
SVC_COLD, SVC_FAB = opt("svcc", 90), opt("svcf", 75)
HOP_PW, HOP_A, HOP_KV, HOP_O, HOP_P = opt("hpw", 1200), opt("ha", 900), opt("hkv", 1200), opt("ho", 1200), opt("hp", 900)
NLAND = opt("nland", 10)

FL, KVB, PWB, ACTB, STB, PRB = 0x1000, 0x40000, 0x140000, 0x300000, 0xD00000, 0xE00000
OOB = 0x40000000
U = lambda n: 16384 * n
STG = U(9); BIASL = U(9) + 8192; KVF = U(9) + 12288
W2U = [4, 5, 3, 6, 7, 8, 0]; WOU = [1, 2, 4, 5]
SX, SWQ, SW1, SW2, SWO, SWS, SOUT, SB1 = 8, 12, 16, 20, 24, 28, 32, 36
sN = 40; sTB = 42
sI, sH, sW, sJ4, sJ, sLA, sLB, sKH, sCS, sCNT = 44, 45, 46, 47, 48, 49, 50, 51, 52, 53
sT = 54
sMC = 60; sPC = 62; sE6 = 64; sQ = 65; sM8 = 66; sFF = 68; sTH = 69; sKA = 70
sKO = 74; sWL = 75; sAK = 76; sSO = 78; sWK = 79; sSO3 = 80; sWOw = 81; sPM = 82; sP0 = 3; sP1 = 4
KA = 84
vL = 1
vX = 2; vW1 = 6; vXr = 10; vW1r = 12; vR = 16; vRr = 17; vP = 19; vB = 20; vBr = 21
vPT = 2
vTabW = 22; vL16 = 23
vPW = 26; vA = 27; vFW = 29; vPP = 30; vPA = 31; vWB = 32; vWO = 36; vO = 38; vPs = 39; vWBr = 40
vN = 52; vT = 54; vKVs = 55; vKVg = 56; vSw = 57; vSr = 58; vKFw = 59; vPl = 60; vG = 62
L3, L7, LG, L5, LQ, L03, LGP, LN = range(192, 200)
t0_, t1_, t2_, t3_, t4_ = range(200, 205)
accH = lambda b, t, rt: 64 + ((b * 2 + t) * 2 + rt) * 4
bias = lambda b, t: 128 + (b * 2 + t) * 4
accK = lambda dt, rt: 160 + (dt * 2 + rt) * 4
accV = lambda dt, rt: 176 + (dt * 2 + rt) * 4
accQ = lambda dt, rt: 192 + (dt * 2 + rt) * 4
vC6 = 208; vOG = 210; vTabA = 212; vTH = 213; vSEL = 216; vPoll = 222
BUF = lambda n: 224 + 8 * (n % 4)
xf = lambda ks, rt: (ks * 2 + rt) * 4
accB = lambda rt, ct: accH(ct, 1, rt)
accO = lambda ct: [96, 100, 112, 116][ct]
prl = lambda ct: [64, 68, 80, 84][ct]
land = lambda n: 256 - 8 * NLAND + 8 * ((n - 3) % NLAND)
wof = lambda hh: 16 * hh
ol = lambda hh: 144 + 4 * hh

G = Gen(); E = G.E
nst = [0]; stn = ["start"]
def stamp(name):
    if name in SEL:
        k = nst[0]; nst[0] += 1
        assert k < 8
        stn.append(name)
        E("s_memrealtime %s" % s(KA + 2 * k, 2))
def MK(name): return [Mark(name), Call(lambda: stamp(name))]
def W(vm=None, lg=None): return Call(lambda: G.wait(vm=vm, lg=lg), 4)
def DELAY(n): return [Call(lambda: None, 16) for _ in range(n)]
BAR = "s_barrier"
MF = "v_mfma_f32_16x16x32_bf16"
spins = []
def checked(name, body, reload):
    k = len(spins)
    def pre(): G.label("L_chk%d" % k)
    def post(): G.label("L_ok%d" % k); stamp(name)
    spins.append(reload)
    return Atom([Call(pre)] + body + ["s_cbranch_scc1 L_spin%d" % k, Call(post), Mark(name)])
def emit_spins():
    for k, reload in enumerate(spins):
        G.label("L_spin%d" % k)
        G.raw("  s_cmp_eq_u32 %s, 0" % s(sCNT))
        G.raw("  s_cbranch_scc1 L_ok%d" % k)
        G.raw("  s_sub_u32 %s, %s, 1" % (s(sCNT), s(sCNT)))
        for r in reload: G.raw("  " + r)
        G.raw("  s_waitcnt vmcnt(0)")
        G.raw("  s_branch L_chk%d" % k)
def poll_vg(ptag, vaddr, at):
    return VG(["buffer_load_dwordx2 %s, %s, %s, 0 offen sc1" % (v(vPoll, 2), v(vaddr), s(SWS, 4))], ptag, lat=LAT_FAB, at=at)
def poll_check(ptag, vaddr, mask, name):
    body = ["v_cmp_ne_u64 vcc, %s, %s" % (v(vPoll, 2), v(vN, 2))]
    if mask is None: body.append("s_cmp_lg_u64 vcc, 0")
    else: body += ["s_and_b32 vcc_lo, vcc_lo, 0x%x" % (mask & 0xffffffff), "s_and_b32 vcc_hi, vcc_hi, 0x%x" % (mask >> 32), "s_cmp_lg_u64 vcc, 0"]
    def f():
        G.wait(vm=ptag)
        S.emit_plain(checked(name, body, ["buffer_load_dwordx2 %s, %s, %s, 0 offen sc1" % (v(vPoll, 2), v(vaddr), s(SWS, 4))]))
    return Check(ptag, f, name + "_")
def flag_vg(typ, tags, name, after=()):
    it = [W(vm=list(tags))]; so = "0"
    if typ: it.append("s_mov_b32 %s, %d" % (s(sSO3), typ * 32768)); so = s(sSO3)
    it.append(Call(lambda: stamp(name)))
    it.append("buffer_store_dwordx2 %s, %s, %s, %s offen sc1" % (v(vN, 2), v(vFW), s(SWS, 4), so))
    return VG(it, name, after=after, lat=LAT_ST, done_tag=tags, mark=name)
def tag_check(name, regs, reload):
    t = v(vT)
    body = ["v_xor_b32 %s, %s, %s" % (v(r + 3), s(sTH), v(r + 3)) for r in regs]
    body += ["v_or3_b32 %s, %s, %s, %s" % (t, v(regs[0] + 3), v(regs[1] + 3), v(regs[2] + 3)), "v_or_b32 %s, %s, %s" % (t, t, v(regs[3] + 3)),
             "v_cmp_lt_u32 vcc, %s, %s" % (s(sFF), t), "s_cmp_lg_u64 vcc, 0"]
    return checked(name, body, reload)

class Unit:
    def __init__(self, pre, reads, mf, post=()): self.pre, self.reads, self.mf, self.post = pre, reads, mf, list(post)
def pipeline(units, L):
    seq = []; N = len(units)
    for n in range(-L, N):
        rd = units[n + L] if n + L < N else None
        mm = units[n] if n >= 0 else None
        if rd: seq += rd.pre
        R = rd.reads if rd else []
        M = mm.mf if mm else []
        for k in range(max(len(R), len(M))):
            if k < len(M): seq.append(M[k])
            if k < len(R): seq.append(R[k])
        if mm: seq += mm.post
    return seq

E("s_cmp_ge_u32 s2, 256"); E("s_cbranch_scc1 L_end")
E("s_load_dwordx16 %s, s[0:1], 0" % s(KA, 16))
E("s_load_dwordx2 %s, s[0:1], 80" % s(SWS, 2))
E("s_load_dwordx2 %s, s[0:1], 64" % s(SOUT, 2))
if STAMPS: E("s_memrealtime s[100:101]")
G.raw("  s_getpc_b64 s[4:5]\nL_pc:")
E("s_bfe_u32 s3, s2, 0x30003"); E("s_lshl_b32 s3, s3, 6")
E("v_lshrrev_b32 %s, 6, v0" % v(vT)); E("v_and_or_b32 v3, v0, 15, s3"); E("v_lshl_add_u32 v2, %s, 4, v3" % v(vT))
E("v_lshlrev_b32 v2, 6, v2"); G.raw("  v_min_u32 v2, L_codeend-L_pc-4, v2")
G.raw("  v_add_co_u32 v2, vcc, s4, v2\n  v_mov_b32 v3, s5\n  v_and_b32 v1, 63, v0\n  v_addc_co_u32 v3, vcc, 0, v3, vcc\n  global_load_dword %s, v[2:3], off" % v(vPoll))
G.vm.append(["cpf", {("v", vPoll)}, False])
E("v_readfirstlane_b32 %s, %s" % (s(sW), v(vT)))
E("s_bfe_u32 %s, s2, 0x20001" % s(sT)); E("s_bfe_u32 %s, s2, 0x20003" % s(sT + 1))
E("s_lshl2_add_u32 %s, %s, %s" % (s(sI), s(sT), s(sT + 1)))
E("s_and_b32 %s, s2, 1" % s(sKH)); E("s_lshr_b32 %s, s2, 5" % s(sCS))
E("s_lshl3_add_u32 %s, %s, %s" % (s(sH), s(sKH), s(sCS)))
for srd, n in ((SWQ, 1204224), (SX, 1835008)):
    E("s_mov_b32 %s, %d" % (s(srd + 2), n)); E("s_mov_b32 %s, 0x20000" % s(srd + 3))
E("s_lshl_b32 %s, %s, 12" % (s(sQ), s(sW)))
E("v_lshrrev_b32 %s, 3, v1" % v(L3)); E("v_and_b32 %s, 7, v1" % v(L7)); E("v_lshrrev_b32 %s, 4, v1" % v(LG)); E("v_lshrrev_b32 %s, 5, v1" % v(L5))
E("v_bfe_u32 %s, v1, 2, 2" % v(LQ)); E("v_and_b32 %s, 3, v1" % v(L03)); E("v_and_b32 %s, 1, %s" % (v(LGP), v(LG))); E("v_and_b32 %s, 15, v1" % v(LN))
T0, T1, T2, T3, T4 = (v(x) for x in (t0_, t1_, t2_, t3_, t4_))
E("v_lshl_add_u32 %s, %s, 2, %s" % (T0, v(L5), v(LQ))); E("v_lshl_add_u32 %s, %s, 3, %s" % (T0, v(LGP), T0))
E("v_mul_u32_u24 %s, 2688, %s" % (T0, T0))
E("v_lshlrev_b32 %s, 1, %s" % (T1, v(LGP))); E("v_xor_b32 %s, %s, %s" % (T1, T1, v(L03))); E("v_lshl_add_u32 %s, %s, 4, %s" % (T0, T1, T0))
E("s_add_u32 %s, %s, 1" % (s(sT), s(sW))); E("s_mul_i32 %s, %s, 896" % (s(sT), s(sT)))
E("s_cmp_eq_u32 %s, 2" % s(sW)); E("s_cselect_b32 %s, 0, %s" % (s(sT), s(sT)))
E("s_cmp_eq_u32 %s, 3" % s(sW)); E("s_cselect_b32 %s, 0x%x, %s" % (s(sT), OOB, s(sT)))
E("s_mul_i32 %s, %s, %d" % (s(sT + 1), s(sI), 32 * 2688)); E("s_add_u32 %s, %s, %s" % (s(sT), s(sT), s(sT + 1)))
E("s_mul_i32 %s, %s, 56" % (s(sT + 1), s(sH))); E("s_add_u32 %s, %s, %s" % (s(sT), s(sT), s(sT + 1)))
E("v_add_u32 %s, %s, %s" % (v(vR), s(sT), T0))
E("s_lshl2_add_u32 %s, %s, %s" % (s(sT), s(sI), s(sW))); E("s_lshl1_add_u32 %s, %s, %s" % (s(sT), s(sT), s(sKH))); E("s_mul_i32 %s, %s, %d" % (s(sT), s(sT), 16 * 896))
E("s_mul_i32 %s, %s, %d" % (s(sT + 1), s(sKH), -28672)); E("s_add_u32 %s, %s, 12288" % (s(sT + 1), s(sT + 1)))
E("v_mul_u32_u24 %s, 896, %s" % (T0, v(L3))); E("v_xor_b32 %s, %s, %s" % (T1, v(L7), v(LG))); E("v_add_u32 %s, %s, %s" % (T0, s(sT), T0))
E("v_lshl_add_u32 %s, %s, 4, %s" % (v(vX), T1, T0)); E("v_xor_b32 %s, 4, %s" % (T1, T1)); E("v_lshl_add_u32 %s, %s, 4, %s" % (T1, T1, T0))
E("v_add_u32 %s, 6144, %s" % (v(vX + 1), T1)); E("v_add_u32 %s, %s, %s" % (v(vX + 2), s(sT + 1), v(vX))); E("v_add_u32 %s, %s, %s" % (v(vX + 3), s(sT + 1), v(vX + 1)))
E("s_lshr_b32 %s, %s, 1" % (s(sT + 1), s(sQ))); E("s_add_u32 m0, %s, %d" % (s(sT + 1), STG))
E("s_mov_b32 %s, %d" % (s(sSO), 16 * 2688 - 1024))
G.wait(lg="all")
E("s_mov_b64 %s, %s" % (s(SWQ, 2), s(KA + 2, 2))); E("s_mov_b64 %s, %s" % (s(SX, 2), s(KA, 2)))
S = Sched(G, t0=opt("t0", 950), cap=opt("cap", 16))
S.slow, S.slow_until = 1.5, 2600
COLD = dict(lat=LAT_COLD, svc=SVC_COLD); FAB = dict(lat=LAT_FAB, svc=SVC_FAB)
def x_vg(st):
    it = [W(lg="x%d" % (st - 3))] if st >= 3 else []
    it.append("s_add_u32 m0, %s, %d" % (s(sQ), U(st % 3)))
    so = "0"
    if st: it.append("s_movk_i32 %s, %d" % (s(sSO), 128 * st)); so = s(sSO)
    else: it.append("s_nop 0")
    for u in range(4): it.append("buffer_load_dwordx4 %s, %s, %s offen offset:%d lds" % (v(vX + u), s(SX, 4), so, 1024 * u))
    return VG(it, "x%d" % st, after=["xr%d" % (st - 3)] if st >= 3 else [], **COLD)
def w_vg(st):
    it = []; so = "0"
    for line in range(2):
        it.append("s_add_u32 m0, %s, %d" % (s(sQ), U(3 + st % 3) + 2048 * line))
        if st and line == 0: it.append("s_mov_b32 %s, %d" % (s(sSO), 64 * 3584 * st)); so = s(sSO)
        for rd in range(2): it.append("buffer_load_dwordx4 %s, %s, %s offen offset:%d lds" % (v(vW1 + 2 * line + rd), s(SW1, 4), so, 1024 * rd))
    return VG(it, "w%d" % st, after=["wad"] + (["b%d" % (st - 2)] if st >= 3 else []), **COLD)
def w2_vg(u, after):
    it = ["s_add_u32 %s, %s, %d" % (s(sWL), s(sW), 4 * u), "v_readlane_b32 %s, %s, %s" % (s(sWK), v(vTabW), s(sWL)), "s_add_u32 m0, %s, %d" % (s(sQ), U(W2U[u]))]
    for k in range(4): it.append("buffer_load_dwordx4 %s, %s, %s offen offset:%d lds" % (v(vWB + k), s(SW2, 4), s(sWK), 1024 * k))
    return VG(it, "wb%d" % u, after=["late"] + list(after), **COLD)
def wo_vg(u, after):
    it = ["s_add_u32 m0, %s, %d" % (s(sQ), U(WOU[u])), "s_add_u32 %s, %s, %d" % (s(sSO), s(sWOw), u * 4 * 28 * 896)]
    for k, r in enumerate((vWB, vWO, vWB + 2, vWO + 1)): it.append("buffer_load_dwordx4 %s, %s, %s offen offset:%d lds" % (v(r), s(SWO, 4), s(sSO), 1024 * k))
    return VG(it, "wo%d" % u, after=after, **COLD)
def kv_lds(ks): return U(6) + 4096 * ks if ks < 12 else STG + 4096 * (ks - 12)
def q_lds(f): return U(1) + 1024 * f if f < 16 else U(2) + 4096 * ((f - 16) // 3) + 1024 * ((f - 16) % 3)
def pw_vg(setup, cnt, after, lg=None):
    it = ([W(lg=lg)] if lg else []) + setup
    for k in range(cnt): it.append("buffer_load_dwordx4 %s, %s, %s offen offset:%d sc1 lds" % (v(vPW), s(SWS, 4), s(sSO), 1024 * k))
    return VG(it, "pwl", after=["cPW_"] + after, **FAB)
def act_vg(n, after):
    it = ["buffer_load_dwordx4 %s, %s, %s, %s offen sc1" % (a(land(n) + 4 * rt, 4), v(vA + rt), s(SWS, 4), s(sAK + (n & 1))) for rt in range(2)]
    if n < 26: it.append("v_readlane_b32 %s, %s, %d" % (s(sAK + (n & 1)), v(vTabA), n + 2))
    return VG(it, "al%d" % n, after=after, **FAB)
def ld(reg, vaddr, so, off): return "buffer_load_dwordx4 %s, %s, %s, %s offen offset:%d sc1" % (v(reg, 4), v(vaddr), s(SWS, 4), so, off)
def st_vg(reg, vaddr, so, off, tag, after): return VG(["buffer_store_dwordx4 %s, %s, %s, %s offen offset:%d sc1" % (v(reg, 4), v(vaddr), s(SWS, 4), so, off)], tag, after=after, lat=LAT_ST)

Q0, Q1, Q2 = S.Q
Q2.append(VG(["buffer_load_dwordx4 %s, %s, 0 offen lds" % (v(vR), s(SWQ, 4)), "buffer_load_dwordx4 %s, %s, %s offen offset:1024 lds" % (v(vR), s(SWQ, 4), s(sSO))], "rp", **COLD))
Q2 += [x_vg(0), w_vg(0)]
Q2.append(VG(["s_lshr_b32 %s, %s, 2" % (s(sSO), s(sQ)), "s_add_u32 m0, %s, %d" % (s(sSO), BIASL), "s_nop 0",
              "buffer_load_dwordx4 %s, %s, 0 offen lds" % (v(vB), s(SB1, 4))], "bias", after=["wad"], **COLD))
x1 = x_vg(1); x1.after = ("wad",)
x2 = x_vg(2); x2.after = ("pwdata",) if opt("x2late", 1) else ("wad",)
w2_ = w_vg(2); w2_.after = x2.after
Q2 += [x1, w_vg(1), x2, w2_]
for st in range(3, 7): Q2 += [x_vg(st), w_vg(st)]
def su(lds, mem): return ["s_add_u32 m0, %s, %d" % (s(sQ), lds), "s_add_u32 %s, %s, %d" % (s(sSO), s(sQ), mem)]
Q2 += [pw_vg(su(U(6), 0), 4, []), pw_vg(su(U(7), 16384), 4, []), pw_vg(su(U(8), 32768), 4, []),
       pw_vg(["s_lshr_b32 %s, %s, 1" % (s(sSO), s(sQ)), "s_add_u32 m0, %s, %d" % (s(sSO), STG), "s_add_u32 %s, %s, 49152" % (s(sSO), s(sSO))], 2, ["b0"]),
       pw_vg(su(U(1), 57344), 4, ["xr4"], "x4"),
       pw_vg(["s_add_u32 m0, %s, %d" % (s(sQ), U(2)), "s_mul_i32 %s, %s, 3072" % (s(sSO), s(sW)), "s_add_u32 %s, %s, %d" % (s(sSO), s(sSO), 57344 + 16384)], 3, ["xr5"], "x5")]
Q2 += [w2_vg(0, ["b5"]), w2_vg(1, ["b6"]), w2_vg(2, ["b7"]), w2_vg(3, ["bk1"]), w2_vg(4, ["bk1"]), w2_vg(5, ["bk1"])]

M = []
m = M.append
m("s_mov_b64 %s, %s" % (s(SW1, 2), s(KA + 8, 2))); m("s_mov_b64 %s, %s" % (s(SB1, 2), s(KA + 10, 2)))
m("s_lshr_b32 %s, %s, 2" % (s(sJ4), s(sH))); m("s_and_b32 %s, %s, 3" % (s(sJ), s(sH)))
m("s_lshl_b32 %s, %s, 2" % (s(sT), s(sJ)))
m("s_lshr_b32 %s, 0x5420, %s" % (s(sLA), s(sT))); m("s_and_b32 %s, %s, 15" % (s(sLA), s(sLA)))
m("s_lshr_b32 %s, 0x6331, %s" % (s(sLB), s(sT))); m("s_and_b32 %s, %s, 15" % (s(sLB), s(sLB)))
for srd, n in ((SW1, 1605632), (SB1, 3584)):
    m("s_mov_b32 %s, %d" % (s(srd + 2), n)); m("s_mov_b32 %s, 0x20000" % s(srd + 3))
m("v_and_b32 %s, 3, %s" % (T0, v(L3))); m("v_lshl_add_u32 %s, %s, 3, %s" % (T0, v(L5), T0)); m("v_mul_u32_u24 %s, 3584, %s" % (T0, T0))
m("v_lshlrev_b32 %s, 1, %s" % (T1, v(LG))); m("v_xor_b32 %s, %s, %s" % (T2, T1, v(L7)))
m("s_mul_i32 %s, %s, 896" % (s(sT + 1), s(sJ4)))
m("s_lshl_b32 %s, %s, 7" % (s(sT + 2), s(sLA))); m("s_add_u32 %s, %s, %s" % (s(sT + 2), s(sT + 2), s(sT + 1)))
m("s_lshl_b32 %s, %s, 7" % (s(sT + 3), s(sLB))); m("s_add_u32 %s, %s, %s" % (s(sT + 3), s(sT + 3), s(sT + 1)))
m("s_mul_i32 %s, %s, %d" % (s(sT), s(sW), 16 * 3584)); m("v_add_u32 %s, %s, %s" % (T0, s(sT), T0))
m("s_cmp_eq_u32 %s, 2" % s(sJ)); m("s_cselect_b32 %s, 4, 0" % s(sT + 4))
m("v_lshl_add_u32 %s, %s, 4, %s" % (T1, T2, T0)); m("v_add_u32 %s, %s, %s" % (v(vW1), s(sT + 2), T1))
m("v_xor_b32 %s, %s, %s" % (T1, s(sT + 4), T2)); m("v_lshl_add_u32 %s, %s, 4, %s" % (T1, T1, T0)); m("v_add_u32 %s, %s, %s" % (v(vW1 + 2), s(sT + 3), T1))
m("v_add_u32 %s, %d, %s" % (v(vW1 + 1), 4 * 3584 - 1024, v(vW1))); m("v_add_u32 %s, %d, %s" % (v(vW1 + 3), 4 * 3584 - 1024, v(vW1 + 2)))
m("s_sub_u32 %s, %s, 128" % (s(sT + 3), s(sT + 3)))
m("v_xor_b32 %s, %s, %s" % (T0, s(sT + 4), v(LN))); m("v_lshl_add_u32 %s, %s, 4, %s" % (T0, T0, s(sT + 3))); m("v_lshl_add_u32 %s, %s, 4, %s" % (T1, v(LN), s(sT + 2)))
m("v_cmp_gt_u32 vcc, 8, %s" % v(LN)); m("s_mov_b32 %s, 0x10000000" % s(SWS + 2)); m("s_mov_b32 %s, 0x20000" % s(SWS + 3))
m("v_cndmask_b32 %s, %s, %s, vcc" % (v(vB), T0, T1))
M += MK("wad")
m("s_lshl_b32 %s, %s, 6" % (s(sT), s(sI))); m("s_min_u32 %s, %s, 832" % (s(sT), s(sT)))
m("s_add_u32 %s, %s, %s" % (s(KA + 14), s(KA + 14), s(sT))); m("s_addc_u32 %s, %s, 0" % (s(KA + 15), s(KA + 15)))
m("s_mov_b64 %s, %s" % (s(SW2, 2), s(KA + 12, 2))); m("s_mov_b64 %s, %s" % (s(SWO, 2), s(KA + 4, 2)))
m("s_load_dwordx2 %s, %s, 0" % (s(sN, 2), s(SWS, 2)))
m("s_load_dwordx16 %s, %s, 0" % (s(KA, 16), s(KA + 14, 2)))
m("s_mov_b32 %s, 0x88888888" % s(sM8)); m("s_mov_b32 %s, 0x88888888" % s(sM8 + 1))
m("v_lshlrev_b32 %s, 4, v1" % v(vL16))
m("s_lshr_b32 %s, %s, 1" % (s(sT), s(sQ))); m("s_add_u32 %s, %s, %d" % (s(sT), s(sT), STG))
m("v_lshl_add_u32 %s, %s, 10, %s" % (T0, v(L5), s(sT))); m("v_lshl_add_u32 %s, %s, 8, %s" % (T0, v(LGP), T0)); m("v_lshl_add_u32 %s, %s, 6, %s" % (T0, v(LQ), T0)); m("v_lshl_add_u32 %s, %s, 3, %s" % (T0, v(L03), T0))
m("v_lshl_add_u32 %s, %s, 5, %s" % (v(vRr), v(LGP), T0)); m("v_xor_b32 %s, 32, %s" % (v(vRr + 1), v(vRr)))
m("s_mul_i32 %s, %s, 86016" % (s(sT), s(sH))); m("s_add_u32 %s, %s, 0x%x" % (s(sT), s(sT), PWB))
m("v_add_u32 %s, %s, %s" % (v(vPW), s(sT), v(vL16)))
m("s_lshl_b32 %s, %s, 12" % (s(sT + 1), s(sI))); m("s_lshr_b32 %s, %s, 1" % (s(sT + 2), s(sQ))); m("s_add_u32 %s, %s, %s" % (s(sT + 1), s(sT + 1), s(sT + 2)))
m("s_lshl_b32 %s, %s, 11" % (s(sT + 2), s(sI))); m("s_add_u32 %s, %s, 57344" % (s(sT + 2), s(sT + 2)))
m("s_cmp_eq_u32 %s, 2" % s(sW)); m("s_cselect_b32 %s, %s, %s" % (s(sT + 1), s(sT + 2), s(sT + 1)))
m("s_cmp_eq_u32 %s, 3" % s(sW)); m("s_cselect_b32 %s, 0x%x, %s" % (s(sT + 1), OOB, s(sT + 1)))
m("s_cmp_ge_u32 %s, 14" % s(sI)); m("s_cselect_b32 %s, 0x%x, %s" % (s(sT + 1), OOB, s(sT + 1)))
m("v_add_u32 %s, %s, %s" % (v(vP), s(sT + 1), v(vPW)))
m("v_lshrrev_b32 %s, 1, %s" % (T0, v(LN))); m("v_xor_b32 %s, %s, %s" % (T0, T0, v(LG))); m("v_lshl_add_u32 %s, %s, 7, %s" % (T1, v(LN), s(sQ)))
m("v_lshl_add_u32 %s, %s, 4, %s" % (v(vXr), T0, T1)); m("v_xor_b32 %s, 64, %s" % (v(vXr + 1), v(vXr)))
m("v_bfe_u32 %s, v1, 2, 3" % T0); m("v_lshlrev_b32 %s, 7, %s" % (T3, T0)); m("v_lshl_add_u32 %s, %s, 3, %s" % (T3, v(L03), T3))
m("v_and_b32 %s, 3, %s" % (T0, v(L3))); m("v_lshl_add_u32 %s, %s, 5, %s" % (T3, T0, T3))
m("v_lshl_add_u32 %s, %s, 12, %s" % (T0, v(L5), T3)); m("v_add_u32 %s, %d, %s" % (v(vW1r), U(3), T0))
for t in range(1, 4): m("v_xor_b32 %s, %d, %s" % (v(vW1r + t), 32 * t, v(vW1r)))
m("s_lshr_b32 %s, %s, 2" % (s(sT), s(sQ))); m("s_add_u32 %s, %s, %d" % (s(sT), s(sT), BIASL)); m("v_lshl_add_u32 %s, %s, 3, %s" % (v(vBr), v(LG), s(sT)))
for k in range(4): m("v_mov_b32 %s, 0" % v(80 + k))
m(Atom([W(lg="all"), "s_cmp_lg_u32 %s, 2" % s(sW), "s_cbranch_scc1 L_nog"] +
       ["v_writelane_b32 %s, %s, %d" % (v(80 + k), s(KA + 4 * g_ + k), 16 * g_ + 3) for g_ in range(4) for k in range(4)] +
       ["v_mov_b32_dpp %s, %s row_newbcast:3 row_mask:0xf bank_mask:0xf" % (v(80 + k), v(80 + k)) for k in range(4)] + [Call(lambda: G.label("L_nog"))]))
if STAMPS:
    def _f(): E("s_mov_b64 %s, s[100:101]" % s(KA, 2)); nst[0] = 1
    m(Call(_f))
M += MK("pc")
m(Need("rp"))
for t in (1, 0):
    for rd in range(2): m("ds_read_b64_tr_b16 %s, %s offset:%d" % (v(84 + 4 * t + 2 * rd, 2), v(vRr + t), 512 * rd))
for q_ in (3, 2, 1):
    for k in range(4): m("v_mov_b32_dpp %s, %s row_shr:%d row_mask:0xf bank_mask:0x%x" % (v(88 + k), v(88 + k), q_, 1 << q_))
for k in range(4): m("v_cndmask_b32_e64 %s, %s, %s, %s" % (v(88 + k), v(88 + k), v(80 + k), s(sM8, 2)))
M += MK("pwdata")
Q0 += [st_vg(84, vP, "0", 0, "pw", ["pwdata"]), st_vg(88, vP, "0", 1024, "pw", ["pwdata"])]
m(Issued("pw"))
m(Need("bias"))
for b in range(4):
    for t in range(2): m("ds_read_b64 %s, %s offset:%d" % (v(bias(b, t) + 2, 2), v(vBr), 64 * b + 32 * t))
for b in range(4):
    for t in range(2):
        q = bias(b, t)
        m("v_lshlrev_b32 %s, 16, %s" % (v(q), v(q + 2))); m("v_and_b32 %s, 0xffff0000, %s" % (v(q + 1), v(q + 2)))
        m("v_lshlrev_b32 %s, 16, %s" % (v(q + 2), v(q + 3))); m("v_and_b32 %s, 0xffff0000, %s" % (v(q + 3), v(q + 3)))
M = glue(M); m = M.append
D = [NeedEv("pwdata")]; d = D.append
d("s_add_u32 %s, %s, 0x7f4a7c15" % (s(sN), s(sN))); d("s_addc_u32 %s, %s, 0x9e3779b9" % (s(sN + 1), s(sN + 1)))
d("v_mov_b32 %s, %s" % (v(vN), s(sN))); d("v_mov_b32 %s, %s" % (v(vN + 1), s(sN + 1)))
d("s_lshl4_add_u32 %s, %s, %s" % (s(sT), s(sI), s(sH))); d("s_lshl4_add_u32 %s, %s, %s" % (s(sT + 1), s(sT), s(sW)))
d("s_lshl_b32 %s, %s, 3" % (s(sT + 1), s(sT + 1))); d("s_add_u32 %s, %s, %d" % (s(sT + 1), s(sT + 1), FL))
d("v_min_u32 %s, 1, v1" % T0); d("v_lshl_add_u32 %s, %s, 30, %s" % (v(vFW), T0, s(sT + 1)))
d("s_lshl_b32 %s, %s, 7" % (s(sT), s(sH))); d("s_add_u32 %s, %s, %d" % (s(sT), s(sT), FL))
d("v_lshrrev_b32 %s, 2, v1" % T0); d("v_lshl_add_u32 %s, %s, 11, %s" % (T0, T0, s(sT))); d("v_lshl_add_u32 %s, %s, 3, %s" % (v(vPP), v(L03), T0))
d("s_mov_b32 %s, 200000" % s(sCNT))
d(Mark("late1"))
d("s_mov_b32 %s, %s" % (s(sMC), fbits(LOG2E))); d("s_mov_b32 %s, %s" % (s(sMC + 1), fbits(0.5 ** 0.5)))
d("s_mov_b32 %s, %s" % (s(sPC), fbits(LOG2E))); d("s_mov_b32 %s, %s" % (s(sPC + 1), fbits(-1e-6 * LOG2E)))
d("s_mov_b32 %s, %s" % (s(sE6), fbits(1e-6))); d("s_mov_b32 %s, 0xffff" % s(sFF))
d("s_lshl_b32 %s, %s, 16" % (s(sTH), s(sN))); d("v_mov_b32 %s, %s" % (v(vTH), s(sTH)))
d("s_and_b32 %s, %s, 0xff" % (s(sTB), s(sN))); d("s_bfe_u32 %s, %s, 0x80008" % (s(sTB + 1), s(sN)))
d("s_mov_b32 %s, 0x03020106" % s(sP0)); d("s_mov_b32 %s, 0x03020107" % s(sP1))
d("s_cmp_eq_u32 %s, 7" % s(sCS))
d("s_cselect_b32 %s, 0, 1605632" % s(SW2 + 2)); d("s_cselect_b32 %s, 0, 401408" % s(SWO + 2))
d("s_mov_b32 %s, 0x20000" % s(SW2 + 3)); d("s_mov_b32 %s, 0x20000" % s(SWO + 3))
d("s_mov_b32 %s, 1835008" % s(SOUT + 2)); d("s_mov_b32 %s, 0x20000" % s(SOUT + 3))
d("v_add_u32 %s, 65536, %s" % (v(vL16 + 1), v(vL16))); d("v_add_u32 %s, 65536, %s" % (v(vL16 + 2), v(vL16 + 1)))
d("s_mul_i32 %s, %s, %d" % (s(sT), s(sI), 72 * 8192)); d("s_add_u32 %s, %s, 0x%x" % (s(sT), s(sT), ACTB))
d("s_lshl1_add_u32 %s, %s, %s" % (s(sT + 1), s(sW), s(sKH))); d("s_lshl_b32 %s, %s, 10" % (s(sT + 1), s(sT + 1))); d("s_add_u32 %s, %s, %s" % (s(sT + 1), s(sT + 1), s(sT)))
d("v_add_u32 %s, %s, %s" % (v(vA), s(sT + 1), v(vL16))); d("v_xor_b32 %s, 1024, %s" % (v(vA + 1), v(vA)))
d("s_mul_i32 %s, %s, 14" % (s(sT), s(sJ4)))
d("s_lshl1_add_u32 %s, %s, %s" % (s(sKA), s(sLA), s(sT))); d("s_add_u32 %s, %s, 1" % (s(sKA + 1), s(sKA)))
d("s_lshl1_add_u32 %s, %s, %s" % (s(sKA + 2), s(sLB), s(sT))); d("s_add_u32 %s, %s, 1" % (s(sKA + 3), s(sKA + 2)))
d("s_cmp_eq_u32 %s, 2" % s(sJ)); d("s_cselect_b32 %s, %s, %s" % (s(sKA + 2), s(sKA + 3), s(sKA + 2))); d("s_cselect_b32 %s, 0x%x, %s" % (s(sKA + 3), OOB >> 13, s(sKA + 3)))
d("s_cmp_eq_u32 %s, 1" % s(sJ)); d("s_cselect_b32 %s, 0x%x, %s" % (s(sKA + 3), OOB >> 13, s(sKA + 3)))
d("s_min_u32 %s, %s, %s" % (s(sT), s(sKA), s(sKA + 2)))
d("s_mul_i32 %s, %s, 28" % (s(sT + 1), s(sKH))); d("s_sub_u32 %s, %s, %s" % (s(sT), s(sT), s(sT + 1))); d("s_add_u32 %s, %s, 3" % (s(sT), s(sT)))
d("s_and_b32 %s, %s, 3" % (s(sT + 2), s(sI))); d("s_mul_i32 %s, %s, %d" % (s(sT + 2), s(sT + 2), opt("rho", 6))); d("s_add_u32 %s, %s, 22" % (s(sT + 2), s(sT + 2)))
d("v_add_u32 %s, %s, v1" % (T0, s(sT + 2)))
for _ in range(2): d("v_subrev_u32 %s, 25, %s" % (T1, T0)); d("v_min_u32 %s, %s, %s" % (T0, T0, T1))
d("v_add_u32 %s, %s, %s" % (T0, s(sT), T0)); d("v_subrev_u32 %s, 28, %s" % (T1, T0)); d("v_min_u32 %s, %s, %s" % (T0, T0, T1))
d("v_add_u32 %s, %s, %s" % (T0, s(sT + 1), T0))
for k in range(3): d("v_writelane_b32 %s, %s, %d" % (T0, s(sKA + k), k))
d("v_lshlrev_b32 %s, 13, %s" % (v(vTabA), T0)); d("v_mul_u32_u24 %s, 28672, %s" % (v(vTabW), T0))
for k in range(4): d("s_lshl_b32 %s, %s, 13" % (s(sKA + k), s(sKA + k)))
d("v_readlane_b32 %s, %s, 3" % (s(sAK + 1), v(vTabA))); d("v_readlane_b32 %s, %s, 4" % (s(sAK), v(vTabA)))
d("s_lshl_b32 %s, %s, 13" % (s(sKO), s(sH))); d("s_add_u32 %s, %s, %d" % (s(sKO), s(sKO), 56 * 8192))
d("s_mul_i32 %s, %s, %d" % (s(sWOw), s(sW), 28 * 896))
d("s_lshl1_add_u32 %s, %s, %s" % (s(sT), s(sI), s(sKH))); d("s_lshl_b32 %s, %s, 10" % (s(sT), s(sT))); d("s_lshl3_add_u32 %s, %s, %s" % (s(sT), s(sW), s(sT)))
d("s_add_u32 %s, %s, %d" % (s(sT), s(sT), FL + 32768)); d("v_lshl_add_u32 %s, %s, 7, %s" % (v(vPA), v(L7), s(sT)))
d("s_lshl_b32 %s, %s, 7" % (s(sT), s(sCS))); d("v_mul_u32_u24 %s, 896, %s" % (T0, v(L3))); d("v_lshl_add_u32 %s, %s, 4, %s" % (T0, T2, T0)); d("v_add_u32 %s, %s, %s" % (v(vWB), s(sT), T0))
d("v_add_u32 %s, %d, %s" % (v(vWB + 1), 16 * 896 - 1024, v(vWB))); d("v_add_u32 %s, %d, %s" % (v(vWB + 2), 8 * 896 - 2048, v(vWB))); d("v_add_u32 %s, %d, %s" % (v(vWB + 3), 24 * 896 - 3072, v(vWB)))
d("v_mul_u32_u24 %s, 896, %s" % (T0, v(L5))); d("v_sub_u32 %s, %s, %s" % (v(vWO), v(vWB + 1), T0)); d("v_add_u32 %s, %d, %s" % (v(vWO + 1), 6 * 896 - 2048, v(vWO)))
d("v_lshl_add_u32 %s, %s, 11, %s" % (v(vWBr), v(L5), T3))
for ct in range(1, 4): d("v_xor_b32 %s, %d, %s" % (v(vWBr + ct), 32 * ct, v(vWBr)))
for k in range(4, 12): d("v_add_u32 %s, 65536, %s" % (v(vWBr + k), v(vWBr + k - 4)))
d("s_and_b32 %s, %s, 1" % (s(sT + 1), s(sW))); d("s_lshl1_add_u32 %s, %s, %s" % (s(sT), s(sH), s(sT + 1))); d("s_lshl_b32 %s, %s, 14" % (s(sT), s(sT))); d("s_add_u32 %s, %s, 0x%x" % (s(sT), s(sT), KVB))
d("s_lshr_b32 %s, %s, 1" % (s(sT + 2), s(sW))); d("s_lshl_b32 %s, %s, 13" % (s(sT + 3), s(sT + 2))); d("s_add_u32 %s, %s, %s" % (s(sT + 3), s(sT + 3), s(sT)))
d("v_add_u32 %s, %s, %s" % (v(vKVg), s(sT + 3), v(vL16)))
d("s_lshl_b32 %s, %s, 10" % (s(sT + 3), s(sI))); d("s_add_u32 %s, %s, %s" % (s(sT + 3), s(sT + 3), s(sT))); d("s_lshl_b32 %s, %s, 30" % (s(sT + 2), s(sT + 2))); d("s_add_u32 %s, %s, %s" % (s(sT + 3), s(sT + 3), s(sT + 2)))
d("v_add_u32 %s, %s, %s" % (v(vKVs), s(sT + 3), v(vL16)))
d("s_lshr_b32 %s, %s, 2" % (s(sT), s(sQ))); d("v_add_u32 %s, %s, %s" % (v(vSw), s(sT), v(vL16)))
d("s_add_u32 %s, %s, %d" % (s(sT), s(sT), KVF)); d("v_add_u32 %s, %s, %s" % (v(vKFw), s(sT), v(vL16)))
d("s_lshl_b32 %s, %s, 12" % (s(sT + 1), s(sT + 1))); d("v_add_u32 %s, %s, %s" % (v(vSr), s(sT + 1), v(vL16)))
d("s_lshl4_add_u32 %s, %s, %s" % (s(sT), s(sI), s(sH))); d("s_lshl_b32 %s, %s, 14" % (s(sT), s(sT))); d("s_add_u32 %s, %s, %s" % (s(sT), s(sT), s(sQ))); d("s_add_u32 %s, %s, 0x%x" % (s(sT), s(sT), PRB))
d("v_add_u32 %s, %s, %s" % (v(vPs), s(sT), v(vL16))); d("v_xor_b32 %s, 0x%x, %s" % (v(vPl), 8 << 14, v(vPs)))
d("s_lshl2_add_u32 %s, %s, %s" % (s(sT), s(sI), s(sW))); d("s_lshl1_add_u32 %s, %s, %s" % (s(sT), s(sT), s(sKH))); d("s_mul_i32 %s, %s, %d" % (s(sT), s(sT), 16 * 896))
d("s_lshl_b32 %s, %s, 7" % (s(sT + 1), s(sCS))); d("s_add_u32 %s, %s, %s" % (s(sT), s(sT), s(sT + 1)))
d("v_mul_u32_u24 %s, 896, %s" % (T0, v(LN))); d("v_lshl_add_u32 %s, %s, 3, %s" % (T0, v(LG), T0)); d("v_add_u32 %s, %s, %s" % (v(vO), s(sT), T0))
for k in range(4): d("v_mov_b32 %s, %s" % (v(vC6 + k), s(sE6)))
d("v_and_b32 %s, 1, v1" % T0); d("v_lshlrev_b32 %s, 4, %s" % (T0, T0)); d("v_mov_b32 %s, 0x3f80" % T1); d("v_lshlrev_b32 %s, %s, %s" % (T0, T0, T1))
d("v_lshrrev_b32 %s, 1, %s" % (T1, v(LN))); d("v_lshlrev_b32 %s, 1, %s" % (T4, v(LG))); d("v_sub_u32 %s, %s, %s" % (T1, T1, T4))
for k in (0, 1, 4, 5): d("v_mov_b32 %s, 0" % v(vSEL + k))
for k in range(2): d(Atom(["v_cmp_eq_u32 vcc, %d, %s" % (k, T1), "s_nop 1", "v_cndmask_b32 %s, %s, %s, vcc" % (v(vSEL + 2 + k), v(vSEL), T0)]))
D += MK("late")
S.F += glue(D)

units = []
for st in range(7):
    for kk in range(2):
        ks = 2 * st + kk
        for b in range(4):
            n = len(units); pre = []
            if kk == 0 and b == 0:
                pre.append(Need("x%d" % st))
                for k2 in range(2):
                    for rt in range(2): pre.append(("ds_read_b128 %s, %s offset:%d" % (a(xf(2 * st + k2, rt), 4), v(vXr + k2), U(st % 3) + 2048 * rt), "x%d" % st))
                pre += [Mark("xr%d" % st), Need("w%d" % st), W(lg="w"), BAR] + MK("b%d" % st)
            reads = [("ds_read_b64_tr_b16 %s, %s offset:%d" % (v(BUF(n) + 4 * t + 2 * rd, 2), v(vW1r + 2 * (b & 1) + t), U(st % 3) + 8192 * kk + 2048 * (b >> 1) + 1024 * rd), "w")
                     for t in range(2) for rd in range(2)]
            mf = ["%s %s, %s, %s, %s" % (MF, v(accH(b, t, rt), 4), v(BUF(n) + 4 * t, 4), a(xf(ks, rt), 4), v(bias(b, t) if ks == 0 else accH(b, t, rt), 4))
                  for t in range(2) for rt in range(2)]
            units.append(Unit(pre, reads, mf))
LA = 2
M += pipeline(units, LA) + MK("p2")
Q0 += [flag_vg(0, ("pw",), "fPW", after=["late1"]), poll_vg("pPW", vPP, ("fPW", HOP_PW))]
S.checks.append(poll_check("pPW", vPP, 0x0077777777777777, "cPW"))

def mish(b):
    T = 128 + 16 * (b & 1); H = accH(b, 0, 0); it = []
    for k in range(8): it.append("v_pk_fma_f32 %s, %s, %s, -0.5 op_sel_hi:[1,0,0]" % (v(T + 2 * k, 2), v(H + 2 * k, 2), s(sMC, 2)))
    for k in range(16): it.append("v_exp_f32 %s, %s" % (v(T + k), v(T + k)))
    for k in range(8): it.append("v_pk_add_f32 %s, %s, %s op_sel:[0,1] op_sel_hi:[1,1]" % (v(T + 2 * k, 2), v(T + 2 * k, 2), s(sMC, 2)))
    for k in range(8): it.append("v_pk_fma_f32 %s, %s, %s, 0.5 op_sel_hi:[1,1,0]" % (v(T + 2 * k, 2), v(T + 2 * k, 2), v(T + 2 * k, 2)))
    for k in range(16): it.append("v_rcp_f32 %s, %s" % (v(T + k), v(T + k)))
    for k in range(8): it.append("v_pk_fma_f32 %s, %s, %s, %s neg_lo:[1,0,0] neg_hi:[1,0,0]" % (v(T + 2 * k, 2), v(H + 2 * k, 2), v(T + 2 * k, 2), v(H + 2 * k, 2)))
    for rt in range(2):
        for t in range(2):
            for k in range(2):
                src = T + (t * 2 + rt) * 4 + 2 * k
                it.append("v_cvt_pk_bf16_f32 %s, %s, %s" % (v(accH(b, 0, rt) + 2 * t + k), v(src), v(src + 1)))
        it.append(Mark("ad%d%d" % (b, rt)))
        Q0.append(st_vg(accH(b, 0, rt), vA + rt, s(sKA + b), 0, "act", ["ad%d%d" % (b, rt)]))
    return it + MK("m%d" % b)
S.F += [NeedEv("p2")] + mish(0) + mish(1) + mish(2) + mish(3)
Q0 += [flag_vg(1, ("act",), "fA"), poll_vg("pA", vPA, ("fA", HOP_A))]

def lds_win(addr): return vL16 + addr // 65536, addr % 65536
units = []
for ks in range(14):
    for sec in range(2):
        n = len(units); pre = []
        if n == 0: pre = [NeedEv("late"), NeedEv(opt("mfirst", "m3")), Need("pwl"), W(lg="all"), BAR] + MK("b7")
        reads = []
        for t in range(2):
            r, o = lds_win(kv_lds(ks) + 2048 * sec + 1024 * t)
            reads.append(("ds_read_b128 %s, %s offset:%d" % (v(BUF(n) + 4 * t, 4), v(r), o), "w"))
        acc = accV if sec else accK
        mf = []
        for t in range(2):
            for rt in range(2):
                c = v(acc(t, rt), 4) if ks else ("0" if sec else v(vC6, 4))
                mf.append("%s %s, %s, %s, %s" % (MF, v(acc(t, rt), 4), a(xf(ks, rt), 4), v(BUF(n) + 4 * t, 4), c))
        units.append(Unit(pre, reads, mf))
M += pipeline(units, LA) + MK("kv")
def phi(A, T):
    it = []
    for k in range(8): it.append("v_pk_fma_f32 %s, %s, %s, %s op_sel:[0,0,1] op_sel_hi:[1,0,1]" % (v(T + 2 * k, 2), v(A + 2 * k, 2), s(sPC, 2), s(sPC, 2)))
    for k in range(16): it.append("v_exp_f32_e64 %s, %s clamp" % (v(T + k), v(T + k)))
    for k in range(16): it.append("v_max_f32 %s, %s, %s" % (v(A + k), s(sE6), v(A + k)))
    for k in range(8): it.append("v_pk_add_f32 %s, %s, %s" % (v(A + 2 * k, 2), v(A + 2 * k, 2), v(T + 2 * k, 2)))
    return it
def pack(d_, lo, hi):
    return ["v_cvt_pk_bf16_f32 %s, %s, %s" % (v(d_), v(lo), v(lo + 1)), "v_cvt_pk_bf16_f32 %s, %s, %s" % (v(d_ + 1), v(lo + 2), v(lo + 3)),
            "v_cvt_pk_bf16_f32 %s, %s, %s" % (v(d_ + 2), v(hi), v(hi + 1)), "v_cvt_pk_bf16_f32 %s, %s, %s" % (v(d_ + 3), v(hi + 2), v(hi + 3))]
def settag(r): return "v_and_or_b32 %s, %s, %s, %s" % (v(r + 3), v(r + 3), s(sFF), v(vTH))
qunits = []
for ks in range(14):
    n = len(qunits); reads = []
    for t in range(2):
        r, o = lds_win(q_lds(2 * ks + t))
        reads.append(("ds_read_b128 %s, %s offset:%d" % (v(BUF(n) + 4 * t, 4), v(r), o), "w"))
    mf = ["%s %s, %s, %s, %s" % (MF, v(accQ(t, rt), 4), v(BUF(n) + 4 * t, 4), a(xf(ks, rt), 4), v(accQ(t, rt), 4) if ks else v(vC6, 4)) for t in range(2) for rt in range(2)]
    qunits.append(Unit([], reads, mf))
ke = phi(accK(0, 0), vPT)
for dt in range(2): ke += pack(accV(dt, 0), accV(dt, 0), accV(dt, 1))
ke.append("v_mov_b32 %s, 0x3f803f80" % v(vT))
for dt in range(2): ke += pack(accK(dt, 0), accK(dt, 0), accK(dt, 1))
for k in range(4): ke.append("v_cndmask_b32_e64 %s, %s, %s, %s" % (v(accV(1, 0) + k), v(accV(1, 0) + k), v(vT), s(sM8, 2)))
KVT = [accK(0, 1), accK(1, 1), accV(0, 1), accV(1, 1)]
for dt in range(2):
    for et in range(2): ke.append("%s %s, %s, %s, 0" % (MF, v(KVT[2 * dt + et], 4), v(accK(dt, 0), 4), v(accV(et, 0), 4)))
ke2 = [NeedEv("m3")] + [("ds_write_b128 %s, %s offset:%d" % (v(vSw), v(KVT[T], 4), 4096 * T), "sw") for T in range(4)]
ke2 += [W(lg="sw"), BAR] + MK("bk1")
ke2 += ["ds_read_b128 %s, %s offset:%d" % (v(128 + 16 * dt + 4 * k, 4), v(vSr), 8192 * dt + 1024 * k) for dt in range(2) for k in range(4)]
ke3 = []
for dt in range(2):
    b = 128 + 16 * dt
    for k in range(2): ke3.append("v_pk_add_f32 %s, %s, %s" % (v(b + 2 * k, 2), v(b + 2 * k, 2), v(b + 4 + 2 * k, 2)))
    for k in range(2): ke3.append("v_pk_add_f32 %s, %s, %s" % (v(b + 8 + 2 * k, 2), v(b + 8 + 2 * k, 2), v(b + 12 + 2 * k, 2)))
    for k in range(2): ke3.append("v_pk_add_f32 %s, %s, %s" % (v(b + 2 * k, 2), v(b + 2 * k, 2), v(b + 8 + 2 * k, 2)))
ke3 += pack(128, 128, 144) + [settag(128)] + MK("kvd") + [Issued("kvp")]
g = st_vg(128, vKVs, "0", 0, "kvp", ["kvd"]); g.mark = "kvst"; Q0.append(g)
qs = pipeline(qunits, LA)
ism = lambda it: isinstance(it, str) and it.startswith("v_mfma")
def cut(seq, nm):
    c = 0
    for k, it in enumerate(seq):
        if ism(it):
            c += 1
            if c > nm: return seq[:k], seq[k:]
    return seq, []
qa, rest = cut(qs, opt("qa", 36)); qb, rest = cut(rest, 4); qc, qd = cut(rest, 8)
M += spread(qa, ke, start=2) + qb + ke2 + qc + ke3 + qd
M += [Need("wb0"), Need("wb1"), Need("wb2"), W(lg="all"), BAR] + MK("bq")
S.checks.append(poll_check("pA", vPA, None, "cA"))
NPRE = min(NLAND, opt("npre", 6))
Q2 += [act_vg(n, ["cA_"]) for n in range(3, 3 + NPRE)]

ph = phi(accQ(0, 0), vPT)
qe = [NeedEv("bq")] + ph[:8] + ["v_exp_f32_e64 %s, -%s" % (v(vG + rt), v(vPT + (2 + rt) * 4 + 3)) for rt in range(2)]
qe += ph[8:12] + ["v_add_f32 %s, 1.0, %s" % (v(vG + rt), v(vG + rt)) for rt in range(2)] + ph[12:16]
qe += ["v_rcp_f32 %s, %s" % (v(vG + rt), v(vG + rt)) for rt in range(2)] + ph[16:]
for rt in range(2): qe += pack(accQ(0, rt), accQ(0, rt), accQ(1, rt))
qe += ["v_and_b32 %s, 0xffff, %s" % (v(accQ(0, rt) + 3), v(accQ(0, rt) + 3)) for rt in range(2)]
qe += ["v_sub_f32 %s, 1.0, %s" % (v(vOG), v(vG))] + MK("qe")
def o_chain():
    it = []
    for gr in range(2):
        regs = [128 + 16 * gr + 4 * k for k in range(4)]
        it += [Need("kvg%d" % gr), tag_check("cKV%d" % gr, regs, ["s_movk_i32 %s, %d" % (s(sPM), 4096 * gr)] + [ld(regs[k], vKVg, s(sPM), 1024 * k) for k in range(4)])]
        for k in range(4):
            first = gr == 0 and k == 0
            it.append("%s %s, %s, %s, %s" % (MF, v(160, 4), v(vSEL + 2, 4), v(regs[k], 4), "0" if first else v(160, 4)))
            it.append("%s %s, %s, %s, %s" % (MF, v(164, 4), v(vSEL, 4), v(regs[k], 4), "0" if first else v(164, 4)))
    it += DELAY(2) + pack(160, 160, 164) + [("ds_write_b128 %s, %s" % (v(vKFw), v(160, 4)), "kvf"), W(lg="kvf"), BAR] + MK("bk2")
    r, o = lds_win(KVF)
    it += ["ds_read_b128 %s, %s offset:%d" % (v(168 + 4 * k, 4), v(r), o + 1024 * k) for k in range(4)]
    it += DELAY(6)
    O = lambda et, rt: 128 + 8 * rt + 4 * et
    for half in range(2):
        for rt in range(2):
            for et in (1, 0): it.append("%s %s, %s, %s, %s" % (MF, v(O(et, rt), 4), v(168 + 8 * half + 4 * et, 4), v(accQ(0, rt), 4), v(O(et, rt), 4) if half else "0"))
    it += DELAY(2)
    sc = lambda rt: vPT + 2 * rt
    for rt in range(2): it.append("v_add_f32 %s, %s, %s" % (v(sc(rt)), s(sE6), v(O(1, rt) + 3)))
    for rt in range(2): it.append("v_rcp_f32 %s, %s" % (v(sc(rt)), v(sc(rt))))
    for rt in range(2): it.append("v_mul_f32 %s, %s, %s" % (v(sc(rt)), v(sc(rt)), v(vG + rt)))
    for rt in range(2):
        for k in range(4): it.append("v_pk_mul_f32 %s, %s, %s op_sel_hi:[1,0]" % (v(O(0, rt) + 2 * k, 2), v(O(0, rt) + 2 * k, 2), v(sc(rt), 2)))
        it += pack(O(0, rt), O(0, rt), O(1, rt)) + [settag(O(0, rt)), Mark("od%d" % rt)]
    return it + [Issued("o")] + MK("ost")
def o_queue():
    S.Q[1].append(VG([ld(128 + 4 * k, vKVg, "0", 1024 * k) for k in range(4)], "kvg0", at=("kvst", HOP_KV), **FAB))
    S.Q[1].append(VG(["s_movk_i32 %s, 4096" % s(sSO)] + [ld(144 + 4 * k, vKVg, s(sSO), 1024 * k) for k in range(4)], "kvg1", at=("kvst", HOP_KV), **FAB))
    for rt in range(2): S.Q[0].append(st_vg(128 + 8 * rt, vA + rt, s(sKO), 0, "o", ["od%d" % rt]))
S.run(M)

if S.cur is not None: S.force(S.cur.tag)
E("s_cmp_eq_u32 %s, 7" % s(sCS)); E("s_cbranch_scc1 L_idle")
GS = ("n", "w", "cread", "stdata", "vm", "lg", "smem", "smem_regs")
savedG = {k: copy.deepcopy(getattr(G, k)) for k in GS}
savedS = dict(t=S.t, mf=S.mf, ta=S.ta, ev=dict(S.ev), comp=dict(S.comp), last=S.last, fl=list(S.fl), Q=[[(g, g.pos) for g in q] for q in S.Q], checks=list(S.checks), F=list(S.F))

def wo_reads(hh):
    un = WOU[hh // 4]
    return [("ds_read_b64_tr_b16 %s, %s offset:%d" % (a(wof(hh) + 4 * ct + 2 * rd, 2), v(vWBr + 4 * (un // 4) + ct), U(un % 4) + 4096 * (hh % 4) + 1024 * rd), "wor") for ct in range(4) for rd in range(2)]
NRES = (256 - 8 * NLAND) // 16
S.F += qe + o_chain()
S.F += [NeedEv("bw2")] + sum((wo_reads(hh) for hh in range(8)), []) + [NeedEv("bw3")] + sum((wo_reads(hh) for hh in range(8, NRES)), []) + [Mark("wor1")]
o_queue()
rest = [act_vg(n, ["cA_"] + (["km%d" % (n - NLAND)] if n - NLAND >= 3 else [])) for n in range(3 + NPRE, 28)]
ins = {2: [wo_vg(0, ["bq"])], 4: [wo_vg(1, ["bq"])], 6: [w2_vg(6, ["bq"])], 9: [wo_vg(2, ["bw2"])], 11: [wo_vg(3, ["bw2"])]}
for k, g in enumerate(rest):
    Q2 += ins.get(k, []) + [g]
for gr in range(4):
    it = []
    for k in range(4):
        hh = 4 * gr + k
        it += ["s_mov_b32 %s, %d" % (s(sSO), (56 + hh) * 8192), ld(ol(hh), vA, s(sSO), 0)]
    (Q1 if opt("oprio", 1) else Q2).append(VG(it, "ol%d" % gr, at=("ost", HOP_O), **FAB))
units = []
for n in range(28):
    un = W2U[n // 4]
    for cp in range(2):
        k = len(units); pre = []
        if cp == 0 and n == 12: pre = [Need("wb3"), Need("wb4"), Need("wb5"), Need("wo0"), Need("wo1"), W(lg="w"), BAR] + MK("bw2")
        if cp == 0 and n == 24: pre = [Need("wb6"), Need("wo2"), Need("wo3"), BAR] + MK("bw3")
        reads = [("ds_read_b64_tr_b16 %s, %s offset:%d" % (v(BUF(k) + 4 * t + 2 * rd, 2), v(vWBr + 4 * (un // 4) + 2 * cp + t), U(un % 4) + 4096 * (n % 4) + 1024 * rd), "w")
                 for t in range(2) for rd in range(2)]
        B = lambda rt: v(accH(n, 0, rt), 4) if n < 3 else a(land(n) + 4 * rt, 4)
        mf = ["%s %s, %s, %s, %s" % (MF, v(accB(rt, 2 * cp + t), 4), v(BUF(k) + 4 * t, 4), B(rt), v(accB(rt, 2 * cp + t), 4) if n else "0")
              for t in range(2) for rt in range(2)]
        post = []
        if cp == 1: post = MK("km%d" % n) + ([Need("al%d" % (n + 1))] if 2 <= n < 27 else [])
        units.append(Unit(pre, reads, mf, post))
M = pipeline(units, 2) + MK("pb")
wl = sum((wo_reads(hh) for hh in range(NRES, 16)), [])
M += wl[:8]
for ct in range(4):
    r = accB(1, ct)
    M += ["v_perm_b32 %s, %s, %s, %s" % (v(r), v(vTH), v(r), s(sP0)), "v_perm_b32 %s, %s, %s, %s" % (v(r + 1), v(vTH), v(r + 1), s(sP1)), Mark("pd%d" % ct)]
    Q0.append(st_vg(r, vPs, "0", 1024 * ct, "pst", ["pd%d" % ct]))
    M += wl[8 + 8 * ct:16 + 8 * ct]
M += wl[40:] + [Issued("pst")] + MK("pst") + [NeedEv("wor1")]
Q1.append(VG([ld(prl(ct), vPl, "0", 1024 * ct) for ct in range(4)], "pl", at=("pst", HOP_P), **FAB))
for gr in range(4):
    regs = [ol(4 * gr + k) for k in range(4)]
    rl = []
    for k in range(4): rl += ["s_mov_b32 %s, %d" % (s(sPM), (56 + 4 * gr + k) * 8192), ld(regs[k], vA, s(sPM), 0)]
    M += [Need("ol%d" % gr), tag_check("cO%d" % gr, regs, rl)]
    for k in range(4):
        hh = 4 * gr + k
        for ct in range(4): M.append("%s %s, %s, %s, %s" % (MF, v(accO(ct), 4), a(wof(hh) + 4 * ct, 4), v(ol(hh), 4), v(accO(ct), 4) if hh else "0"))
M += MK("po")
body = []
for ct in range(4): body += ["v_xor_b32 %s, %s, %s" % (v(prl(ct) + k), s(sTB + k), v(prl(ct) + k)) for k in range(2)]
t = v(vT)
body += ["v_or3_b32 %s, %s, %s, %s" % (t, v(prl(0)), v(prl(0) + 1), v(prl(1))), "v_or3_b32 %s, %s, %s, %s" % (t, t, v(prl(1) + 1), v(prl(2))),
         "v_or3_b32 %s, %s, %s, %s" % (t, t, v(prl(2) + 1), v(prl(3))), "v_or_b32 %s, %s, %s" % (t, t, v(prl(3) + 1)),
         "v_and_b32 %s, 0xff, %s" % (t, t), "v_cmp_ne_u32 vcc, 0, %s" % t, "s_cmp_lg_u64 vcc, 0"]
M += [Need("pl"), checked("cP", body, [ld(prl(ct), vPl, "0", 1024 * ct) for ct in range(4)])]
for ct in range(4):
    r = accB(0, ct)
    for k in range(2): M.append("v_pk_add_f32 %s, %s, %s" % (v(r + 2 * k, 2), v(r + 2 * k, 2), v(prl(ct) + 2 * k, 2)))
for ct in range(4):
    r = accB(0, ct)
    for k in range(2): M.append("v_pk_fma_f32 %s, %s, %s, %s op_sel_hi:[1,0,1]" % (v(r + 2 * k, 2), v(r + 2 * k, 2), v(vOG, 2), v(accO(ct) + 2 * k, 2)))
    M.append("v_cvt_pk_bf16_f32 %s, %s, %s" % (v(r), v(r), v(r + 1))); M.append("v_cvt_pk_bf16_f32 %s, %s, %s" % (v(r + 1), v(r + 2), v(r + 3)))
    M.append("buffer_store_dwordx2 %s, %s, %s, 0 offen offset:%d" % (v(r, 2), v(vO), s(SOUT, 4), 32 * ct))
S.run(M); S.drain(); S.mark("end")
print("sim:", " ".join("%s=%d" % (n, t) for t, n in S.log if not n.startswith(("ad", "xr", "od", "pd")) and not n.endswith("_")), file=sys.stderr)
if "--vlog" in sys.argv: print(" ".join("%s@%d>%d" % (tg, t, c) for t, tg, c in S.vlog), file=sys.stderr)
E("s_cmp_lg_u32 s2, 0"); E("s_cbranch_scc1 L_fin")
E("v_mov_b32 %s, 0" % v(vT))
E("buffer_store_dwordx2 %s, %s, %s, 0 offen sc1" % (v(vN, 2), v(vT), s(SWS, 4)))
G.label("L_fin")
def dump_stamps():
    if not STAMPS: return
    G.raw("  s_memrealtime s[100:101]\n  s_waitcnt vmcnt(0) lgkmcnt(0)\n  s_memrealtime s[4:5]\n  s_waitcnt lgkmcnt(0)")
    G.raw("  s_lshl2_add_u32 s3, s2, %s\n  s_mul_i32 s3, s3, 80\n  s_add_u32 s3, s3, 0x%x\n  v_mov_b32 v2, s3" % (s(sW), STB))
    for k, r in enumerate([KA + 2 * k for k in range(8)] + [100, 4]):
        G.raw("  v_mov_b32 v4, s%d\n  v_mov_b32 v5, s%d\n  buffer_store_dwordx2 v[4:5], v2, %s, 0 offen offset:%d\n  s_nop 1" % (r, r + 1, s(SWS, 4), 8 * k))
dump_stamps()
G.label("L_end")
G.raw("  s_endpgm")
G.label("L_idle")
for k in GS: setattr(G, k, savedG[k])
SEL = []
S.t, S.mf, S.ta, S.ev, S.comp, S.last, S.fl = (savedS[k] for k in ("t", "mf", "ta", "ev", "comp", "last", "fl"))
S.cur = None
keep = lambda g: not (g.tag.startswith("al") or g.tag.startswith("wb") or g.tag.startswith("pA"))
for qi in range(3):
    S.Q[qi][:] = [g for g, p in savedS["Q"][qi] if keep(g)]
    for g, p in savedS["Q"][qi]: g.pos = p
S.checks = []
S.F = savedS["F"] + qe + o_chain()
o_queue()
S.drain()
G.raw("  s_endpgm")
emit_spins()
G.label("L_codeend")

hdr = open("cdna_kernels/%s.s.ref" % NAME).read().split("; Override launch geometry")[0]
txt = hdr + """; @launch grid=(256,1,1) block=(256,1,1) lds=163840
.amdgcn_target "amdgcn-amd-amdhsa--gfx950"
.text
.globl {N}_kernel
.p2align 8
.type {N}_kernel,@function
{N}_kernel:
{B}.section .rodata,"a"
.p2align 6
.amdhsa_kernel {N}_kernel
  .amdhsa_next_free_vgpr 512
  .amdhsa_next_free_sgpr 102
  .amdhsa_accum_offset 256
  .amdhsa_group_segment_fixed_size 0
  .amdhsa_kernarg_size 88
  .amdhsa_user_sgpr_count 2
  .amdhsa_user_sgpr_kernarg_segment_ptr 1
  .amdhsa_system_sgpr_workgroup_id_x 1
.end_amdhsa_kernel
""".format(N=NAME, B=G.text())
if "--cyc" in sys.argv: txt = txt.replace("s_memrealtime", "s_memtime")
open(OUTF, "w").write(txt)
print("stats", G.stats, "nops", G.nops, "maxvm", G.maxvm, "stamps", stn, file=sys.stderr)
open(OUTF + ".names", "w").write(" ".join(stn + ["-"] * (8 - len(stn)) + ["end", "drain"]))
```

```python
import sys, copy, struct
sys.path.insert(0, "work")
from asmgen import *
from sched3 import *
NAME = "gated_mix__linear_attn_block__dense_activation_mish__prompt"
SEL = [x[5:].split(",") for x in sys.argv if x.startswith("--st=")]
SEL = SEL[0] if SEL else []
STAMPS = bool(SEL)
OPT = dict(x[2:].split("=") for x in sys.argv if x.startswith("--") and "=" in x and not x.startswith("--st="))
def opt(k, d): return type(d)(OPT.get(k, d))
OUTF = [x for x in sys.argv[1:] if not x.startswith("--")][0]
def fbits(x): return "0x%08x" % struct.unpack("<I", struct.pack("<f", x))[0]
LOG2E = 1.4426950408889634
LAT_COLD, LAT_L2, LAT_FAB, LAT_ST = opt("cold", 1300), opt("l2", 700), opt("fab", 1400), opt("lst", 1300)
SVC_COLD, SVC_FAB = opt("svcc", 90), opt("svcf", 75)
HOP_PW, HOP_A, HOP_KV, HOP_O, HOP_P = opt("hpw", 1200), opt("ha", 900), opt("hkv", 1200), opt("ho", 1200), opt("hp", 900)
NLAND = opt("nland", 10)

FL, KVB, PWB, ACTB, STB, PRB = 0x1000, 0x40000, 0x140000, 0x300000, 0xD00000, 0xE00000
OOB = 0x40000000
U = lambda n: 16384 * n
STG = U(8) + 8192; BIASL = U(9); KVF = U(9)
KL, VL, QL2, SL = U(3), U(0), U(9) + 4096, U(3)
W2U = [5, 6, 7, 8, 4, 0, 1]; WOU = [2, 3, 5, 6]
NB = opt("nb", 8); NL4 = opt("nl4", 20); CB = [int(c) for c in opt("cb", "035")]
SX, SWQ, SW1, SW2, SWO, SWS, SOUT, SB1 = 8, 12, 16, 20, 24, 28, 32, 36
sN = 40; sTB = 42
sI, sH, sW, sJ4, sJ, sLA, sLB, sKH, sCS, sCNT = 44, 45, 46, 47, 48, 49, 50, 51, 52, 53
sT = 54
sMC = 60; sPC = 62; sE6 = 64; sQ = 65; sM8 = 66; sFF = 68; sTH = 69; sKA = 70
sQ2 = 83; sKO = 74; sWL = 75; sAK = 76; sSO = 78; sWK = 79; sSO3 = 80; sWOw = 81; sPM = 82; sP0 = 3; sP1 = 4
KA = 84
vL = 1
vX = 2; vW1 = 6; vXr = 10; vW1r = 12; vR = 16; vRr = 17; vP = 19; vB = 20; vBr = 21
vPT = 2
vTabW = 22; vL16 = 23
vPW = 26; vA = 27; vFW = 29; vPP = 30; vPA = 31; vWB = 32; vWO = 36; vO = 38; vPs = 39; vWBr = 40
vN = 52; vT = 54; vKVs = 55; vKVg = 56; vSw = 57; vSr = 58; vKFw = 59; vPl = 60; vG = 62
L3, L7, LG, L5, LQ, L03, LGP, LN = range(192, 200)
t0_, t1_, t2_, t3_, t4_ = range(200, 205)
accH = lambda b, t, rt: 64 + ((b * 2 + t) * 2 + rt) * 4
bias = lambda b, t: 128 + (b * 2 + t) * 4
accK = lambda dt, rt: 160 + (dt * 2 + rt) * 4
accV = lambda dt, rt: 176 + (dt * 2 + rt) * 4
accQ = lambda dt, rt: 192 + (dt * 2 + rt) * 4
vC6 = 208; vOG = 210; vTabA = 212; vTH = 213; vSEL = 216; vPoll = 222
BUF = lambda n: 224 + 8 * (n % 4)
xf = lambda ks, rt: (ks * 2 + rt) * 4
accB = lambda rt, ct: accH(ct, 1, rt)
accO = lambda ct: [96, 100, 112, 116][ct]
prl = lambda ct: [64, 68, 80, 84][ct]
land = lambda e: 256 - 4 * NL4 + 4 * (e % NL4)
wof = lambda hh: 16 * hh
ol = lambda hh: 144 + 4 * hh

G = Gen(); E = G.E
nst = [0]; stn = ["start"]
def stamp(name):
    if name in SEL:
        k = nst[0]; nst[0] += 1
        assert k < 8
        stn.append(name)
        E("s_memrealtime %s" % s(KA + 2 * k, 2))
def MK(name): return [Mark(name), Call(lambda: stamp(name))]
def W(vm=None, lg=None): return Call(lambda: G.wait(vm=vm, lg=lg), 4)
def DELAY(n): return [Call(lambda: None, 16) for _ in range(n)]
BAR = "s_barrier"
MF = "v_mfma_f32_16x16x32_bf16"
spins = []
def checked(name, body, reload):
    k = len(spins)
    def pre(): G.label("L_chk%d" % k)
    def post(): G.label("L_ok%d" % k); stamp(name)
    spins.append(reload)
    return Atom([Call(pre)] + body + ["s_cbranch_scc1 L_spin%d" % k, Call(post), Mark(name)])
def emit_spins():
    for k, reload in enumerate(spins):
        G.label("L_spin%d" % k)
        G.raw("  s_cmp_eq_u32 %s, 0" % s(sCNT))
        G.raw("  s_cbranch_scc1 L_ok%d" % k)
        G.raw("  s_sub_u32 %s, %s, 1" % (s(sCNT), s(sCNT)))
        for r in reload: G.raw("  " + r)
        G.raw("  s_waitcnt vmcnt(0)")
        G.raw("  s_branch L_chk%d" % k)
def poll_vg(ptag, vaddr, at):
    return VG(["buffer_load_dwordx2 %s, %s, %s, 0 offen sc1" % (v(vPoll, 2), v(vaddr), s(SWS, 4))], ptag, lat=LAT_FAB, at=at)
def poll_check(ptag, vaddr, mask, name):
    body = ["v_cmp_ne_u64 vcc, %s, %s" % (v(vPoll, 2), v(vN, 2))]
    if mask is None: body.append("s_cmp_lg_u64 vcc, 0")
    else: body += ["s_and_b32 vcc_lo, vcc_lo, 0x%x" % (mask & 0xffffffff), "s_and_b32 vcc_hi, vcc_hi, 0x%x" % (mask >> 32), "s_cmp_lg_u64 vcc, 0"]
    def f():
        G.wait(vm=ptag)
        S.emit_plain(checked(name, body, ["buffer_load_dwordx2 %s, %s, %s, 0 offen sc1" % (v(vPoll, 2), v(vaddr), s(SWS, 4))]))
    return Check(ptag, f, name + "_")
def flag_vg(typ, tags, name, after=()):
    it = [W(vm=list(tags))]; so = "0"
    if typ: it.append("s_mov_b32 %s, %d" % (s(sSO3), typ * 32768)); so = s(sSO3)
    it.append(Call(lambda: stamp(name)))
    it.append("buffer_store_dwordx2 %s, %s, %s, %s offen sc1" % (v(vN, 2), v(vFW), s(SWS, 4), so))
    return VG(it, name, after=after, lat=LAT_ST, done_tag=tags, mark=name)
def tag_check(name, regs, reload):
    t = v(vT)
    body = ["v_xor_b32 %s, %s, %s" % (v(r + 3), s(sTH), v(r + 3)) for r in regs]
    body += ["v_or3_b32 %s, %s, %s, %s" % (t, v(regs[0] + 3), v(regs[1] + 3), v(regs[2] + 3)), "v_or_b32 %s, %s, %s" % (t, t, v(regs[3] + 3)),
             "v_cmp_lt_u32 vcc, %s, %s" % (s(sFF), t), "s_cmp_lg_u64 vcc, 0"]
    return checked(name, body, reload)

class Unit:
    def __init__(self, pre, reads, mf, post=()): self.pre, self.reads, self.mf, self.post = pre, reads, mf, list(post)
def pipeline(units, L):
    seq = []; N = len(units)
    for n in range(-L, N):
        rd = units[n + L] if n + L < N else None
        mm = units[n] if n >= 0 else None
        if rd: seq += rd.pre
        R = rd.reads if rd else []
        M = mm.mf if mm else []
        for k in range(max(len(R), len(M))):
            if k < len(M): seq.append(M[k])
            if k < len(R): seq.append(R[k])
        if mm: seq += mm.post
    return seq

E("s_cmp_ge_u32 s2, 256"); E("s_cbranch_scc1 L_end")
E("s_load_dwordx16 %s, s[0:1], 0" % s(KA, 16))
E("s_load_dwordx2 %s, s[0:1], 80" % s(SWS, 2))
E("s_load_dwordx2 %s, s[0:1], 64" % s(SOUT, 2))
if STAMPS: E("s_memrealtime s[100:101]")
G.raw("  s_getpc_b64 s[4:5]\nL_pc:")
E("s_bfe_u32 s3, s2, 0x30003"); E("s_lshl_b32 s3, s3, 6")
E("v_lshrrev_b32 %s, 6, v0" % v(vT)); E("v_and_or_b32 v3, v0, 15, s3"); E("v_lshl_add_u32 v2, %s, 4, v3" % v(vT))
E("v_lshlrev_b32 v2, 6, v2"); G.raw("  v_min_u32 v2, L_codeend-L_pc-4, v2")
G.raw("  v_add_co_u32 v2, vcc, s4, v2\n  v_mov_b32 v3, s5\n  v_and_b32 v1, 63, v0\n  v_addc_co_u32 v3, vcc, 0, v3, vcc\n  global_load_dword %s, v[2:3], off" % v(vPoll))
G.vm.append(["cpf", {("v", vPoll)}, False])
E("v_readfirstlane_b32 %s, %s" % (s(sW), v(vT)))
E("s_bfe_u32 %s, s2, 0x20001" % s(sT)); E("s_bfe_u32 %s, s2, 0x20003" % s(sT + 1))
E("s_lshl2_add_u32 %s, %s, %s" % (s(sI), s(sT), s(sT + 1)))
E("s_and_b32 %s, s2, 1" % s(sKH)); E("s_lshr_b32 %s, s2, 5" % s(sCS))
E("s_lshl3_add_u32 %s, %s, %s" % (s(sH), s(sKH), s(sCS)))
for srd, n in ((SWQ, 1204224), (SX, 1835008)):
    E("s_mov_b32 %s, %d" % (s(srd + 2), n)); E("s_mov_b32 %s, 0x20000" % s(srd + 3))
E("s_lshl_b32 %s, %s, 12" % (s(sQ), s(sW)))
E("v_lshrrev_b32 %s, 3, v1" % v(L3)); E("v_and_b32 %s, 7, v1" % v(L7)); E("v_lshrrev_b32 %s, 4, v1" % v(LG)); E("v_lshrrev_b32 %s, 5, v1" % v(L5))
E("v_bfe_u32 %s, v1, 2, 2" % v(LQ)); E("v_and_b32 %s, 3, v1" % v(L03)); E("v_and_b32 %s, 1, %s" % (v(LGP), v(LG))); E("v_and_b32 %s, 15, v1" % v(LN))
T0, T1, T2, T3, T4 = (v(x) for x in (t0_, t1_, t2_, t3_, t4_))
E("v_lshl_add_u32 %s, %s, 2, %s" % (T0, v(L5), v(LQ))); E("v_lshl_add_u32 %s, %s, 3, %s" % (T0, v(LGP), T0))
E("v_mul_u32_u24 %s, 2688, %s" % (T0, T0))
E("v_lshlrev_b32 %s, 1, %s" % (T1, v(LGP))); E("v_xor_b32 %s, %s, %s" % (T1, T1, v(L03))); E("v_lshl_add_u32 %s, %s, 4, %s" % (T0, T1, T0))
E("s_add_u32 %s, %s, 1" % (s(sT), s(sW))); E("s_mul_i32 %s, %s, 896" % (s(sT), s(sT)))
E("s_cmp_eq_u32 %s, 2" % s(sW)); E("s_cselect_b32 %s, 0, %s" % (s(sT), s(sT)))
E("s_cmp_eq_u32 %s, 3" % s(sW)); E("s_cselect_b32 %s, 0x%x, %s" % (s(sT), OOB, s(sT)))
E("s_mul_i32 %s, %s, %d" % (s(sT + 1), s(sI), 32 * 2688)); E("s_add_u32 %s, %s, %s" % (s(sT), s(sT), s(sT + 1)))
E("s_mul_i32 %s, %s, 56" % (s(sT + 1), s(sH))); E("s_add_u32 %s, %s, %s" % (s(sT), s(sT), s(sT + 1)))
E("v_add_u32 %s, %s, %s" % (v(vR), s(sT), T0))
E("s_lshl2_add_u32 %s, %s, %s" % (s(sT), s(sI), s(sW))); E("s_lshl1_add_u32 %s, %s, %s" % (s(sT), s(sT), s(sKH))); E("s_mul_i32 %s, %s, %d" % (s(sT), s(sT), 16 * 896))
E("s_mul_i32 %s, %s, %d" % (s(sT + 1), s(sKH), -28672)); E("s_add_u32 %s, %s, 12288" % (s(sT + 1), s(sT + 1)))
E("v_mul_u32_u24 %s, 896, %s" % (T0, v(L3))); E("v_xor_b32 %s, %s, %s" % (T1, v(L7), v(LG))); E("v_add_u32 %s, %s, %s" % (T0, s(sT), T0))
E("v_lshl_add_u32 %s, %s, 4, %s" % (v(vX), T1, T0)); E("v_xor_b32 %s, 4, %s" % (T1, T1)); E("v_lshl_add_u32 %s, %s, 4, %s" % (T1, T1, T0))
E("v_add_u32 %s, 6144, %s" % (v(vX + 1), T1)); E("v_add_u32 %s, %s, %s" % (v(vX + 2), s(sT + 1), v(vX))); E("v_add_u32 %s, %s, %s" % (v(vX + 3), s(sT + 1), v(vX + 1)))
E("s_lshr_b32 %s, %s, 1" % (s(sQ2), s(sQ))); E("s_add_u32 m0, %s, %d" % (s(sQ2), STG))
E("s_mov_b32 %s, %d" % (s(sSO), 16 * 2688 - 1024))
G.wait(lg="all")
E("s_mov_b64 %s, %s" % (s(SWQ, 2), s(KA + 2, 2))); E("s_mov_b64 %s, %s" % (s(SX, 2), s(KA, 2)))
S = Sched(G, t0=opt("t0", 950), cap=opt("cap", 16))
S.slow, S.slow_until = 1.5, 2600
COLD = dict(lat=LAT_COLD, svc=SVC_COLD); FAB = dict(lat=LAT_FAB, svc=SVC_FAB)
def x_vg(st):
    it = [W(lg="x%d" % (st - 3))] if st >= 3 else []
    it.append("s_add_u32 m0, %s, %d" % (s(sQ), U(st % 3)))
    so = "0"
    if st: it.append("s_movk_i32 %s, %d" % (s(sSO), 128 * st)); so = s(sSO)
    else: it.append("s_nop 0")
    for u in range(4): it.append("buffer_load_dwordx4 %s, %s, %s offen offset:%d lds" % (v(vX + u), s(SX, 4), so, 1024 * u))
    return VG(it, "x%d" % st, after=["xr%d" % (st - 3)] if st >= 3 else [], **COLD)
def w_vg(st, line):
    so = "0"
    it = ["s_add_u32 m0, %s, %d" % (s(sQ2), U(5) + 8192 * st if line else U(3) + 8192 * (st % 4))]
    if st: it.append("s_mov_b32 %s, %d" % (s(sSO), 64 * 3584 * st)); so = s(sSO)
    else: it.append("s_nop 0")
    for rd in range(2): it.append("buffer_load_dwordx4 %s, %s, %s offen offset:%d lds" % (v(vW1 + 2 * line + rd), s(SW1, 4), so, 1024 * rd))
    return VG(it, "w%s%d" % ("AB"[line], st), after=["wad"] + (["b%d" % (st - 3)] if st >= 4 and not line else []), **COLD)
def w2_vg(u, after):
    it = ["s_add_u32 %s, %s, %d" % (s(sWL), s(sW), 4 * u), "v_readlane_b32 %s, %s, %s" % (s(sWK), v(vTabW), s(sWL)), "s_add_u32 m0, %s, %d" % (s(sQ), U(W2U[u]))]
    for k in range(4): it.append("buffer_load_dwordx4 %s, %s, %s offen offset:%d lds" % (v(vWB + k), s(SW2, 4), s(sWK), 1024 * k))
    return VG(it, "wb%d" % u, after=["late"] + list(after), **COLD)
def wo_vg(u, after):
    it = ["s_add_u32 m0, %s, %d" % (s(sQ), U(WOU[u])), "s_add_u32 %s, %s, %d" % (s(sSO), s(sWOw), u * 4 * 28 * 896)]
    for k, r in enumerate((vWB, vWO, vWB + 2, vWO + 1)): it.append("buffer_load_dwordx4 %s, %s, %s offen offset:%d lds" % (v(r), s(SWO, 4), s(sSO), 1024 * k))
    return VG(it, "wo%d" % u, after=after, **COLD)
def q_lds(f): return U(2) + 1024 * f if f < 16 else QL2 + 1024 * (f - 16)
def pw_vg(tag, mul, lds, mem, cnt):
    if mul == 4096: it = ["s_add_u32 m0, %s, %d" % (s(sQ), lds), "s_add_u32 %s, %s, %d" % (s(sSO), s(sQ), mem)]
    else: it = ["s_mul_i32 %s, %s, %d" % (s(sSO), s(sW), mul), "s_add_u32 m0, %s, %d" % (s(sSO), lds), "s_add_u32 %s, %s, %d" % (s(sSO), s(sSO), mem)]
    for k in range(cnt): it.append("buffer_load_dwordx4 %s, %s, %s offen offset:%d sc1 lds" % (v(vPW), s(SWS, 4), s(sSO), 1024 * k))
    return VG(it, tag, after=["cPW_", "c0"], **FAB)
AG = [(n, (0, 1)) for n in range(3, 3 + NB)] + [(n, (1,)) for n in range(3 + NB, 28)] + [(n, (0,)) for n in range(3 + NB, 28)]
ENT = {}
for n, rts in AG:
    for rt in rts: ENT[(n, rt)] = len(ENT)
ENTI = {e: k for k, e in ENT.items()}
def act_vg(j):
    n, rts = AG[j]
    it = ["buffer_load_dwordx4 %s, %s, %s, %s offen sc1" % (a(land(ENT[(n, rt)]), 4), v(vA + rt), s(SWS, 4), s(sAK + (j & 1))) for rt in rts]
    if j + 2 < len(AG): it.append("v_readlane_b32 %s, %s, %d" % (s(sAK + (j & 1)), v(vTabA), AG[j + 2][0]))
    e = ENT[(n, rts[-1])] - NL4
    return VG(it, "al%d" % j, after=["cA_"] + (["ke%d" % e] if e >= 0 else []), lat=opt("lact", 1100), svc=opt("svca", 68))
def ld(reg, vaddr, so, off): return "buffer_load_dwordx4 %s, %s, %s, %s offen offset:%d sc1" % (v(reg, 4), v(vaddr), s(SWS, 4), so, off)
def st_vg(reg, vaddr, so, off, tag, after): return VG(["buffer_store_dwordx4 %s, %s, %s, %s offen offset:%d sc1" % (v(reg, 4), v(vaddr), s(SWS, 4), so, off)], tag, after=after, lat=LAT_ST)

Q0, Q1, Q2 = S.Q
Q2.append(VG(["buffer_load_dwordx4 %s, %s, 0 offen lds" % (v(vR), s(SWQ, 4)), "buffer_load_dwordx4 %s, %s, %s offen offset:1024 lds" % (v(vR), s(SWQ, 4), s(sSO))], "rp", **COLD))
Q2.append(x_vg(0))
Q2.append(VG(["s_lshr_b32 %s, %s, 2" % (s(sSO), s(sQ)), "s_add_u32 m0, %s, %d" % (s(sSO), BIASL), "s_nop 0",
              "buffer_load_dwordx4 %s, %s, 0 offen lds" % (v(vB), s(SB1, 4))], "bias", after=["wad"], **COLD))
x1 = x_vg(1); x1.after = ("wad",)
x2 = x_vg(2); x2.after = ("wad",)
Q2 += [w_vg(0, 0), x1, w_vg(1, 0), x2, w_vg(2, 0)]
for st in range(3, 7): Q2 += [x_vg(st), w_vg(st, 0)]
for st in range(7):
    g_ = w_vg(st, 1); g_.after = ("b%d" % opt("wbafter", 1),); Q2.append(g_)
Q2 += [pw_vg("pwk", 7168, KL, 0, 4), pw_vg("pwk", 7168, KL + 4096, 4096, 3), pw_vg("pwv", 7168, VL, 28672, 4), pw_vg("pwv", 7168, VL + 4096, 28672 + 4096, 3),
       pw_vg("pwq", 4096, U(2), 57344, 4), pw_vg("pwq", 3072, QL2, 57344 + 16384, 3)]
W2A = []
for u in range(4):
    nxt = [k for k, c in enumerate(CB) if c > 2 * u + 1]
    W2A.append("c%d" % nxt[0] if nxt else "b7")
Q2 += [w2_vg(u, [W2A[u]]) for u in range(4)] + [w2_vg(4, ["bkk"]), w2_vg(5, ["bk1"]), w2_vg(6, ["bk1"])]

M = []
m = M.append
m("s_mov_b64 %s, %s" % (s(SW1, 2), s(KA + 8, 2))); m("s_mov_b64 %s, %s" % (s(SB1, 2), s(KA + 10, 2)))
m("s_lshr_b32 %s, %s, 2" % (s(sJ4), s(sH))); m("s_and_b32 %s, %s, 3" % (s(sJ), s(sH)))
m("s_lshl_b32 %s, %s, 2" % (s(sT), s(sJ)))
m("s_lshr_b32 %s, 0x5420, %s" % (s(sLA), s(sT))); m("s_and_b32 %s, %s, 15" % (s(sLA), s(sLA)))
m("s_lshr_b32 %s, 0x6331, %s" % (s(sLB), s(sT))); m("s_and_b32 %s, %s, 15" % (s(sLB), s(sLB)))
for srd, n in ((SW1, 1605632), (SB1, 3584)):
    m("s_mov_b32 %s, %d" % (s(srd + 2), n)); m("s_mov_b32 %s, 0x20000" % s(srd + 3))
m("v_and_b32 %s, 3, %s" % (T0, v(L3))); m("v_lshl_add_u32 %s, %s, 3, %s" % (T0, v(L5), T0)); m("v_mul_u32_u24 %s, 3584, %s" % (T0, T0))
m("v_lshlrev_b32 %s, 1, %s" % (T1, v(LG))); m("v_xor_b32 %s, %s, %s" % (T2, T1, v(L7)))
m("s_mul_i32 %s, %s, 896" % (s(sT + 1), s(sJ4)))
m("s_lshl_b32 %s, %s, 7" % (s(sT + 2), s(sLA))); m("s_add_u32 %s, %s, %s" % (s(sT + 2), s(sT + 2), s(sT + 1)))
m("s_lshl_b32 %s, %s, 7" % (s(sT + 3), s(sLB))); m("s_add_u32 %s, %s, %s" % (s(sT + 3), s(sT + 3), s(sT + 1)))
m("s_mul_i32 %s, %s, %d" % (s(sT), s(sW), 16 * 3584)); m("v_add_u32 %s, %s, %s" % (T0, s(sT), T0))
m("s_cmp_eq_u32 %s, 2" % s(sJ)); m("s_cselect_b32 %s, 4, 0" % s(sT + 4))
m("v_lshl_add_u32 %s, %s, 4, %s" % (T1, T2, T0)); m("v_add_u32 %s, %s, %s" % (v(vW1), s(sT + 2), T1))
m("v_xor_b32 %s, %s, %s" % (T1, s(sT + 4), T2)); m("v_lshl_add_u32 %s, %s, 4, %s" % (T1, T1, T0)); m("v_add_u32 %s, %s, %s" % (v(vW1 + 2), s(sT + 3), T1))
m("v_add_u32 %s, %d, %s" % (v(vW1 + 1), 4 * 3584 - 1024, v(vW1))); m("v_add_u32 %s, %d, %s" % (v(vW1 + 3), 4 * 3584 - 1024, v(vW1 + 2)))
m("s_sub_u32 %s, %s, 128" % (s(sT + 3), s(sT + 3)))
m("v_xor_b32 %s, %s, %s" % (T0, s(sT + 4), v(LN))); m("v_lshl_add_u32 %s, %s, 4, %s" % (T0, T0, s(sT + 3))); m("v_lshl_add_u32 %s, %s, 4, %s" % (T1, v(LN), s(sT + 2)))
m("v_cmp_gt_u32 vcc, 8, %s" % v(LN)); m("s_mov_b32 %s, 0x10000000" % s(SWS + 2)); m("s_mov_b32 %s, 0x20000" % s(SWS + 3))
m("v_cndmask_b32 %s, %s, %s, vcc" % (v(vB), T0, T1))
M += MK("wad")
m("s_lshl_b32 %s, %s, 6" % (s(sT), s(sI))); m("s_min_u32 %s, %s, 832" % (s(sT), s(sT)))
m("s_add_u32 %s, %s, %s" % (s(KA + 14), s(KA + 14), s(sT))); m("s_addc_u32 %s, %s, 0" % (s(KA + 15), s(KA + 15)))
m("s_mov_b64 %s, %s" % (s(SW2, 2), s(KA + 12, 2))); m("s_mov_b64 %s, %s" % (s(SWO, 2), s(KA + 4, 2)))
m("s_load_dwordx2 %s, %s, 0" % (s(sN, 2), s(SWS, 2)))
m("s_load_dwordx16 %s, %s, 0" % (s(KA, 16), s(KA + 14, 2)))
m("s_mov_b32 %s, 0x88888888" % s(sM8)); m("s_mov_b32 %s, 0x88888888" % s(sM8 + 1))
m("v_lshlrev_b32 %s, 4, v1" % v(vL16))
m("s_add_u32 %s, %s, %d" % (s(sT), s(sQ2), STG))
m("v_lshl_add_u32 %s, %s, 10, %s" % (T0, v(L5), s(sT))); m("v_lshl_add_u32 %s, %s, 8, %s" % (T0, v(LGP), T0)); m("v_lshl_add_u32 %s, %s, 6, %s" % (T0, v(LQ), T0)); m("v_lshl_add_u32 %s, %s, 3, %s" % (T0, v(L03), T0))
m("v_lshl_add_u32 %s, %s, 5, %s" % (v(vRr), v(LGP), T0)); m("v_xor_b32 %s, 32, %s" % (v(vRr + 1), v(vRr)))
m("s_mul_i32 %s, %s, 86016" % (s(sT), s(sH))); m("s_add_u32 %s, %s, 0x%x" % (s(sT), s(sT), PWB))
m("v_add_u32 %s, %s, %s" % (v(vPW), s(sT), v(vL16)))
m("s_lshl_b32 %s, %s, 11" % (s(sT + 1), s(sI))); m("s_mul_i32 %s, %s, 28672" % (s(sT + 2), s(sW))); m("s_add_u32 %s, %s, %s" % (s(sT + 1), s(sT + 1), s(sT + 2)))
m("s_cmp_eq_u32 %s, 3" % s(sW)); m("s_cselect_b32 %s, 0x%x, %s" % (s(sT + 1), OOB, s(sT + 1)))
m("s_cmp_ge_u32 %s, 14" % s(sI)); m("s_cselect_b32 %s, 0x%x, %s" % (s(sT + 1), OOB, s(sT + 1)))
m("v_add_u32 %s, %s, %s" % (v(vP), s(sT + 1), v(vPW)))
m("v_lshrrev_b32 %s, 1, %s" % (T0, v(LN))); m("v_xor_b32 %s, %s, %s" % (T0, T0, v(LG))); m("v_lshl_add_u32 %s, %s, 7, %s" % (T1, v(LN), s(sQ)))
m("v_lshl_add_u32 %s, %s, 4, %s" % (v(vXr), T0, T1)); m("v_xor_b32 %s, 64, %s" % (v(vXr + 1), v(vXr)))
m("v_bfe_u32 %s, v1, 2, 3" % T0); m("v_lshlrev_b32 %s, 7, %s" % (T3, T0)); m("v_lshl_add_u32 %s, %s, 3, %s" % (T3, v(L03), T3))
m("v_and_b32 %s, 3, %s" % (T0, v(L3))); m("v_lshl_add_u32 %s, %s, 5, %s" % (T3, T0, T3))
m("v_lshl_add_u32 %s, %s, 11, %s" % (T0, v(L5), T3)); m("v_add_u32 %s, %d, %s" % (v(vW1r), U(3), T0))
for t in range(1, 4): m("v_xor_b32 %s, %d, %s" % (v(vW1r + t), 32 * t, v(vW1r)))
m("s_lshr_b32 %s, %s, 2" % (s(sT), s(sQ))); m("s_add_u32 %s, %s, %d" % (s(sT), s(sT), BIASL)); m("v_lshl_add_u32 %s, %s, 3, %s" % (v(vBr), v(LG), s(sT)))
for k in range(4): m("v_mov_b32 %s, 0" % v(80 + k))
m(Atom([W(lg="all"), "s_cmp_lg_u32 %s, 2" % s(sW), "s_cbranch_scc1 L_nog"] +
       ["v_writelane_b32 %s, %s, %d" % (v(80 + k), s(KA + 4 * g_ + k), 16 * g_ + 3) for g_ in range(4) for k in range(4)] +
       ["v_mov_b32_dpp %s, %s row_newbcast:3 row_mask:0xf bank_mask:0xf" % (v(80 + k), v(80 + k)) for k in range(4)] + [Call(lambda: G.label("L_nog"))]))
if STAMPS:
    def _f(): E("s_mov_b64 %s, s[100:101]" % s(KA, 2)); nst[0] = 1
    m(Call(_f))
M += MK("pc")
m(Need("rp"))
for t in (1, 0):
    for rd in range(2): m("ds_read_b64_tr_b16 %s, %s offset:%d" % (v(84 + 4 * t + 2 * rd, 2), v(vRr + t), 512 * rd))
for q_ in (3, 2, 1):
    for k in range(4): m("v_mov_b32_dpp %s, %s row_shr:%d row_mask:0xf bank_mask:0x%x" % (v(88 + k), v(88 + k), q_, 1 << q_))
for k in range(4): m("v_cndmask_b32_e64 %s, %s, %s, %s" % (v(88 + k), v(88 + k), v(80 + k), s(sM8, 2)))
M += MK("pwdata")
Q0 += [st_vg(84, vP, "0", 0, "pw", ["pwdata"]), st_vg(88, vP, "0", 1024, "pw", ["pwdata"])]
m(Issued("pw"))
m(Need("bias"))
for b in range(4):
    for t in range(2): m("ds_read_b64 %s, %s offset:%d" % (v(bias(b, t) + 2, 2), v(vBr), 64 * b + 32 * t))
for b in range(4):
    for t in range(2):
        q = bias(b, t)
        m("v_lshlrev_b32 %s, 16, %s" % (v(q), v(q + 2))); m("v_and_b32 %s, 0xffff0000, %s" % (v(q + 1), v(q + 2)))
        m("v_lshlrev_b32 %s, 16, %s" % (v(q + 2), v(q + 3))); m("v_and_b32 %s, 0xffff0000, %s" % (v(q + 3), v(q + 3)))
M = glue(M); m = M.append
D = [NeedEv("pwdata")]; d = D.append
d("s_add_u32 %s, %s, 0x7f4a7c15" % (s(sN), s(sN))); d("s_addc_u32 %s, %s, 0x9e3779b9" % (s(sN + 1), s(sN + 1)))
d("v_mov_b32 %s, %s" % (v(vN), s(sN))); d("v_mov_b32 %s, %s" % (v(vN + 1), s(sN + 1)))
d("s_lshl4_add_u32 %s, %s, %s" % (s(sT), s(sI), s(sH))); d("s_lshl4_add_u32 %s, %s, %s" % (s(sT + 1), s(sT), s(sW)))
d("s_lshl_b32 %s, %s, 3" % (s(sT + 1), s(sT + 1))); d("s_add_u32 %s, %s, %d" % (s(sT + 1), s(sT + 1), FL))
d("v_min_u32 %s, 1, v1" % T0); d("v_lshl_add_u32 %s, %s, 30, %s" % (v(vFW), T0, s(sT + 1)))
d("s_lshl_b32 %s, %s, 7" % (s(sT), s(sH))); d("s_add_u32 %s, %s, %d" % (s(sT), s(sT), FL))
d("v_lshrrev_b32 %s, 2, v1" % T0); d("v_lshl_add_u32 %s, %s, 11, %s" % (T0, T0, s(sT))); d("v_lshl_add_u32 %s, %s, 3, %s" % (v(vPP), v(L03), T0))
d("s_mov_b32 %s, 200000" % s(sCNT))
d(Mark("late1"))
d("s_mov_b32 %s, %s" % (s(sMC), fbits(LOG2E))); d("s_mov_b32 %s, %s" % (s(sMC + 1), fbits(0.5 ** 0.5)))
d("s_mov_b32 %s, %s" % (s(sPC), fbits(LOG2E))); d("s_mov_b32 %s, %s" % (s(sPC + 1), fbits(-1e-6 * LOG2E)))
d("s_mov_b32 %s, %s" % (s(sE6), fbits(1e-6))); d("s_mov_b32 %s, 0xffff" % s(sFF))
d("s_lshl_b32 %s, %s, 16" % (s(sTH), s(sN))); d("v_mov_b32 %s, %s" % (v(vTH), s(sTH)))
d("s_and_b32 %s, %s, 0xff" % (s(sTB), s(sN))); d("s_bfe_u32 %s, %s, 0x80008" % (s(sTB + 1), s(sN)))
d("s_mov_b32 %s, 0x03020106" % s(sP0)); d("s_mov_b32 %s, 0x03020107" % s(sP1))
d("s_cmp_eq_u32 %s, 7" % s(sCS))
d("s_cselect_b32 %s, 0, 1605632" % s(SW2 + 2)); d("s_cselect_b32 %s, 0, 401408" % s(SWO + 2))
d("s_mov_b32 %s, 0x20000" % s(SW2 + 3)); d("s_mov_b32 %s, 0x20000" % s(SWO + 3))
d("s_mov_b32 %s, 1835008" % s(SOUT + 2)); d("s_mov_b32 %s, 0x20000" % s(SOUT + 3))
d("v_add_u32 %s, 65536, %s" % (v(vL16 + 1), v(vL16))); d("v_add_u32 %s, 65536, %s" % (v(vL16 + 2), v(vL16 + 1)))
d("s_mul_i32 %s, %s, %d" % (s(sT), s(sI), 72 * 8192)); d("s_add_u32 %s, %s, 0x%x" % (s(sT), s(sT), ACTB))
d("s_lshl1_add_u32 %s, %s, %s" % (s(sT + 1), s(sW), s(sKH))); d("s_lshl_b32 %s, %s, 10" % (s(sT + 1), s(sT + 1))); d("s_add_u32 %s, %s, %s" % (s(sT + 1), s(sT + 1), s(sT)))
d("v_add_u32 %s, %s, %s" % (v(vA), s(sT + 1), v(vL16))); d("v_xor_b32 %s, 1024, %s" % (v(vA + 1), v(vA)))
d("s_mul_i32 %s, %s, 14" % (s(sT), s(sJ4)))
d("s_lshl1_add_u32 %s, %s, %s" % (s(sKA), s(sLA), s(sT))); d("s_add_u32 %s, %s, 1" % (s(sKA + 1), s(sKA)))
d("s_lshl1_add_u32 %s, %s, %s" % (s(sKA + 2), s(sLB), s(sT))); d("s_add_u32 %s, %s, 1" % (s(sKA + 3), s(sKA + 2)))
d("s_cmp_eq_u32 %s, 2" % s(sJ)); d("s_cselect_b32 %s, %s, %s" % (s(sKA + 2), s(sKA + 3), s(sKA + 2))); d("s_cselect_b32 %s, 0x%x, %s" % (s(sKA + 3), OOB >> 13, s(sKA + 3)))
d("s_cmp_eq_u32 %s, 1" % s(sJ)); d("s_cselect_b32 %s, 0x%x, %s" % (s(sKA + 3), OOB >> 13, s(sKA + 3)))
d("s_min_u32 %s, %s, %s" % (s(sT), s(sKA), s(sKA + 2)))
d("s_mul_i32 %s, %s, 28" % (s(sT + 1), s(sKH))); d("s_sub_u32 %s, %s, %s" % (s(sT), s(sT), s(sT + 1))); d("s_add_u32 %s, %s, 3" % (s(sT), s(sT)))
d("s_and_b32 %s, %s, 3" % (s(sT + 2), s(sI))); d("s_mul_i32 %s, %s, %d" % (s(sT + 2), s(sT + 2), opt("rho", 6))); d("s_add_u32 %s, %s, 22" % (s(sT + 2), s(sT + 2)))
d("v_add_u32 %s, %s, v1" % (T0, s(sT + 2)))
for _ in range(2): d("v_subrev_u32 %s, 25, %s" % (T1, T0)); d("v_min_u32 %s, %s, %s" % (T0, T0, T1))
d("v_add_u32 %s, %s, %s" % (T0, s(sT), T0)); d("v_subrev_u32 %s, 28, %s" % (T1, T0)); d("v_min_u32 %s, %s, %s" % (T0, T0, T1))
d("v_add_u32 %s, %s, %s" % (T0, s(sT + 1), T0))
for k in range(3): d("v_writelane_b32 %s, %s, %d" % (T0, s(sKA + k), k))
d("v_lshlrev_b32 %s, 13, %s" % (v(vTabA), T0)); d("v_mul_u32_u24 %s, 28672, %s" % (v(vTabW), T0))
for k in range(4): d("s_lshl_b32 %s, %s, 13" % (s(sKA + k), s(sKA + k)))
d("v_readlane_b32 %s, %s, 3" % (s(sAK), v(vTabA))); d("v_readlane_b32 %s, %s, 4" % (s(sAK + 1), v(vTabA)))
d("s_lshl_b32 %s, %s, 13" % (s(sKO), s(sH))); d("s_add_u32 %s, %s, %d" % (s(sKO), s(sKO), 56 * 8192))
d("s_mul_i32 %s, %s, %d" % (s(sWOw), s(sW), 28 * 896))
d("s_lshl1_add_u32 %s, %s, %s" % (s(sT), s(sI), s(sKH))); d("s_lshl_b32 %s, %s, 10" % (s(sT), s(sT))); d("s_lshl3_add_u32 %s, %s, %s" % (s(sT), s(sW), s(sT)))
d("s_add_u32 %s, %s, %d" % (s(sT), s(sT), FL + 32768)); d("v_lshl_add_u32 %s, %s, 7, %s" % (v(vPA), v(L7), s(sT)))
d("s_lshl_b32 %s, %s, 7" % (s(sT), s(sCS))); d("v_mul_u32_u24 %s, 896, %s" % (T0, v(L3))); d("v_lshl_add_u32 %s, %s, 4, %s" % (T0, T2, T0)); d("v_add_u32 %s, %s, %s" % (v(vWB), s(sT), T0))
d("v_add_u32 %s, %d, %s" % (v(vWB + 1), 16 * 896 - 1024, v(vWB))); d("v_add_u32 %s, %d, %s" % (v(vWB + 2), 8 * 896 - 2048, v(vWB))); d("v_add_u32 %s, %d, %s" % (v(vWB + 3), 24 * 896 - 3072, v(vWB)))
d("v_mul_u32_u24 %s, 896, %s" % (T0, v(L5))); d("v_sub_u32 %s, %s, %s" % (v(vWO), v(vWB + 1), T0)); d("v_add_u32 %s, %d, %s" % (v(vWO + 1), 6 * 896 - 2048, v(vWO)))
d("v_lshl_add_u32 %s, %s, 11, %s" % (v(vWBr), v(L5), T3))
for ct in range(1, 4): d("v_xor_b32 %s, %d, %s" % (v(vWBr + ct), 32 * ct, v(vWBr)))
for k in range(4, 12): d("v_add_u32 %s, 65536, %s" % (v(vWBr + k), v(vWBr + k - 4)))
d("s_and_b32 %s, %s, 1" % (s(sT + 1), s(sW))); d("s_lshl1_add_u32 %s, %s, %s" % (s(sT), s(sH), s(sT + 1))); d("s_lshl_b32 %s, %s, 14" % (s(sT), s(sT))); d("s_add_u32 %s, %s, 0x%x" % (s(sT), s(sT), KVB))
d("s_lshr_b32 %s, %s, 1" % (s(sT + 2), s(sW))); d("s_lshl_b32 %s, %s, 13" % (s(sT + 3), s(sT + 2))); d("s_add_u32 %s, %s, %s" % (s(sT + 3), s(sT + 3), s(sT)))
d("v_add_u32 %s, %s, %s" % (v(vKVg), s(sT + 3), v(vL16)))
d("s_lshl_b32 %s, %s, 10" % (s(sT + 3), s(sI))); d("s_add_u32 %s, %s, %s" % (s(sT + 3), s(sT + 3), s(sT))); d("s_lshl_b32 %s, %s, 30" % (s(sT + 2), s(sT + 2))); d("s_add_u32 %s, %s, %s" % (s(sT + 3), s(sT + 3), s(sT + 2)))
d("v_add_u32 %s, %s, %s" % (v(vKVs), s(sT + 3), v(vL16)))
d("s_lshr_b32 %s, %s, 2" % (s(sT), s(sQ))); d("s_add_u32 %s, %s, %d" % (s(sT), s(sT), SL)); d("v_add_u32 %s, %s, %s" % (v(vSw), s(sT), v(vL16)))
d("v_add_u32 %s, %d, %s" % (v(vKFw), KVF - SL, v(vSw)))
d("s_lshl_b32 %s, %s, 12" % (s(sT + 1), s(sT + 1))); d("s_add_u32 %s, %s, %d" % (s(sT + 1), s(sT + 1), SL)); d("v_add_u32 %s, %s, %s" % (v(vSr), s(sT + 1), v(vL16)))
d("s_lshl4_add_u32 %s, %s, %s" % (s(sT), s(sI), s(sH))); d("s_lshl_b32 %s, %s, 14" % (s(sT), s(sT))); d("s_add_u32 %s, %s, %s" % (s(sT), s(sT), s(sQ))); d("s_add_u32 %s, %s, 0x%x" % (s(sT), s(sT), PRB))
d("v_add_u32 %s, %s, %s" % (v(vPs), s(sT), v(vL16))); d("v_xor_b32 %s, 0x%x, %s" % (v(vPl), 8 << 14, v(vPs)))
d("s_lshl2_add_u32 %s, %s, %s" % (s(sT), s(sI), s(sW))); d("s_lshl1_add_u32 %s, %s, %s" % (s(sT), s(sT), s(sKH))); d("s_mul_i32 %s, %s, %d" % (s(sT), s(sT), 16 * 896))
d("s_lshl_b32 %s, %s, 7" % (s(sT + 1), s(sCS))); d("s_add_u32 %s, %s, %s" % (s(sT), s(sT), s(sT + 1)))
d("v_mul_u32_u24 %s, 896, %s" % (T0, v(LN))); d("v_lshl_add_u32 %s, %s, 3, %s" % (T0, v(LG), T0)); d("v_add_u32 %s, %s, %s" % (v(vO), s(sT), T0))
for k in range(4): d("v_mov_b32 %s, %s" % (v(vC6 + k), s(sE6)))
d("v_and_b32 %s, 1, v1" % T0); d("v_lshlrev_b32 %s, 4, %s" % (T0, T0)); d("v_mov_b32 %s, 0x3f80" % T1); d("v_lshlrev_b32 %s, %s, %s" % (T0, T0, T1))
d("v_lshrrev_b32 %s, 1, %s" % (T1, v(LN))); d("v_lshlrev_b32 %s, 1, %s" % (T4, v(LG))); d("v_sub_u32 %s, %s, %s" % (T1, T1, T4))
for k in (0, 1, 4, 5): d("v_mov_b32 %s, 0" % v(vSEL + k))
for k in range(2): d(Atom(["v_cmp_eq_u32 vcc, %d, %s" % (k, T1), "s_nop 1", "v_cndmask_b32 %s, %s, %s, vcc" % (v(vSEL + 2 + k), v(vSEL), T0)]))
D += MK("late")
S.F += glue(D)

units = []
for half in range(2):
    for st in range(7):
        for kk in range(2):
            ks = 2 * st + kk
            for b in (2 * half, 2 * half + 1):
                n = len(units); pre = []; post = []
                if kk == 0 and b == 0:
                    pre.append(Need("x%d" % st))
                    for k2 in range(2):
                        for rt in range(2): pre.append(("ds_read_b128 %s, %s offset:%d" % (a(xf(2 * st + k2, rt), 4), v(vXr + k2), U(st % 3) + 2048 * rt), "x%d" % st))
                    pre += [Mark("xr%d" % st), Need("wA%d" % st), W(lg="w"), BAR] + MK("b%d" % st)
                if kk == 0 and b == 2 and st in CB:
                    k = CB.index(st); last = (CB + [7])[k + 1] - 1
                    pre += [Need("wB%d" % last), W(lg="all" if st == 0 else "w"), BAR] + MK("c%d" % k)
                    if st == 0: pre += ["v_add_u32 %s, %d, %s" % (v(vW1r + t), U(5) - U(3), v(vW1r + t)) for t in range(4)]
                if ks == 13 and b == 1: post = MK("p2a")
                if ks == 0 and b == 3: post = [Mark("bias23")]
                reads = [("ds_read_b64_tr_b16 %s, %s offset:%d" % (v(BUF(n) + 4 * t + 2 * rd, 2), v(vW1r + 2 * (b & 1) + t), 8192 * (st if half else st % 4) + 4096 * kk + 1024 * rd), "w")
                         for t in range(2) for rd in range(2)]
                mf = ["%s %s, %s, %s, %s" % (MF, v(accH(b, t, rt), 4), v(BUF(n) + 4 * t, 4), a(xf(ks, rt), 4), v(bias(b, t) if ks == 0 else accH(b, t, rt), 4))
                      for t in range(2) for rt in range(2)]
                units.append(Unit(pre, reads, mf, post))
LA = 2
M += pipeline(units, LA) + MK("p2")
Q0 += [flag_vg(0, ("pw",), "fPW", after=["late1"]), poll_vg("pPW", vPP, ("fPW", HOP_PW))]
S.checks.append(poll_check("pPW", vPP, 0x0077777777777777, "cPW"))

def mish(b):
    T = 128 + 16 * (b & 1); H = accH(b, 0, 0); it = []
    for k in range(8): it.append("v_pk_fma_f32 %s, %s, %s, -0.5 op_sel_hi:[1,0,0]" % (v(T + 2 * k, 2), v(H + 2 * k, 2), s(sMC, 2)))
    for k in range(16): it.append("v_exp_f32 %s, %s" % (v(T + k), v(T + k)))
    for k in range(8): it.append("v_pk_add_f32 %s, %s, %s op_sel:[0,1] op_sel_hi:[1,1]" % (v(T + 2 * k, 2), v(T + 2 * k, 2), s(sMC, 2)))
    for k in range(8): it.append("v_pk_fma_f32 %s, %s, %s, 0.5 op_sel_hi:[1,1,0]" % (v(T + 2 * k, 2), v(T + 2 * k, 2), v(T + 2 * k, 2)))
    for k in range(16): it.append("v_rcp_f32 %s, %s" % (v(T + k), v(T + k)))
    for k in range(8): it.append("v_pk_fma_f32 %s, %s, %s, %s neg_lo:[1,0,0] neg_hi:[1,0,0]" % (v(T + 2 * k, 2), v(H + 2 * k, 2), v(T + 2 * k, 2), v(H + 2 * k, 2)))
    for rt in range(2):
        for t in range(2):
            for k in range(2):
                src = T + (t * 2 + rt) * 4 + 2 * k
                it.append("v_cvt_pk_bf16_f32 %s, %s, %s" % (v(accH(b, 0, rt) + 2 * t + k), v(src), v(src + 1)))
        it.append(Mark("ad%d%d" % (b, rt)))
        Q0.append(st_vg(accH(b, 0, rt), vA + rt, s(sKA + b), 0, "act", ["ad%d%d" % (b, rt)]))
    return it + MK("m%d" % b)
S.F += [NeedEv("p2a")] + mish(0) + [NeedEv("bias23")] + mish(1) + [NeedEv("p2")] + mish(2) + mish(3)
Q0 += [flag_vg(1, ("act",), "fA"), poll_vg("pA", vPA, ("fA", HOP_A))]

def lds_win(addr): return vL16 + addr // 65536, addr % 65536
def kv_units(sec, pre):
    units = []
    for ks in range(14):
        n = 14 * sec + ks; reads = []
        for t in range(2):
            r, o = lds_win((VL if sec else KL) + 2048 * ks + 1024 * t)
            reads.append(("ds_read_b128 %s, %s offset:%d" % (v(BUF(n) + 4 * t, 4), v(r), o), "w"))
        acc = accV if sec else accK
        mf = []
        for t in range(2):
            for rt in range(2):
                c = v(acc(t, rt), 4) if ks else ("0" if sec else v(vC6, 4))
                mf.append("%s %s, %s, %s, %s" % (MF, v(acc(t, rt), 4), a(xf(ks, rt), 4), v(BUF(n) + 4 * t, 4), c))
        units.append(Unit(pre if ks == 0 else [], reads, mf, MK("kv"[sec] + "d_") if ks == 13 else []))
    return units
def phi(A, T):
    it = []
    for k in range(8): it.append("v_pk_fma_f32 %s, %s, %s, %s op_sel:[0,0,1] op_sel_hi:[1,0,1]" % (v(T + 2 * k, 2), v(A + 2 * k, 2), s(sPC, 2), s(sPC, 2)))
    for k in range(16): it.append("v_exp_f32_e64 %s, %s clamp" % (v(T + k), v(T + k)))
    for k in range(16): it.append("v_max_f32 %s, %s, %s" % (v(A + k), s(sE6), v(A + k)))
    for k in range(8): it.append("v_pk_add_f32 %s, %s, %s" % (v(A + 2 * k, 2), v(A + 2 * k, 2), v(T + 2 * k, 2)))
    return it
def pack(d_, lo, hi):
    return ["v_cvt_pk_bf16_f32 %s, %s, %s" % (v(d_), v(lo), v(lo + 1)), "v_cvt_pk_bf16_f32 %s, %s, %s" % (v(d_ + 1), v(lo + 2), v(lo + 3)),
            "v_cvt_pk_bf16_f32 %s, %s, %s" % (v(d_ + 2), v(hi), v(hi + 1)), "v_cvt_pk_bf16_f32 %s, %s, %s" % (v(d_ + 3), v(hi + 2), v(hi + 3))]
def settag(r): return "v_and_or_b32 %s, %s, %s, %s" % (v(r + 3), v(r + 3), s(sFF), v(vTH))
qunits = []
for ks in range(14):
    n = 28 + ks; reads = []
    for t in range(2):
        r, o = lds_win(q_lds(2 * ks + t))
        reads.append(("ds_read_b128 %s, %s offset:%d" % (v(BUF(n) + 4 * t, 4), v(r), o), "w"))
    mf = ["%s %s, %s, %s, %s" % (MF, v(accQ(t, rt), 4), v(BUF(n) + 4 * t, 4), a(xf(ks, rt), 4), v(accQ(t, rt), 4) if ks else v(vC6, 4)) for t in range(2) for rt in range(2)]
    qunits.append(Unit([], reads, mf))
ku = kv_units(0, [NeedEv("late"), NeedEv(opt("mfirst", "m1")), Need("pwk"), W(lg="all"), BAR] + MK("b7"))
vu = kv_units(1, [Need("pwv"), Need("pwq"), W(lg="w"), BAR] + MK("bkk"))
ke = phi(accK(0, 0), vPT)
for dt in range(2): ke += pack(accK(dt, 0), accK(dt, 0), accK(dt, 1))
ke.append("v_mov_b32 %s, 0x3f803f80" % v(vT))
ke1 = pack(accV(1, 0), accV(1, 0), accV(1, 1)) + pack(accV(0, 0), accV(0, 0), accV(0, 1))
for k in range(4): ke1.append("v_cndmask_b32_e64 %s, %s, %s, %s" % (v(accV(1, 0) + k), v(accV(1, 0) + k), v(vT), s(sM8, 2)))
KVT = [accK(0, 1), accK(1, 1), accV(0, 1), accV(1, 1)]
for et in range(2):
    for dt in range(2): ke1.append("%s %s, %s, %s, 0" % (MF, v(KVT[2 * dt + et], 4), v(accK(dt, 0), 4), v(accV(et, 0), 4)))
ke2 = [("ds_write_b128 %s, %s offset:%d" % (v(vSw), v(KVT[T], 4), 4096 * T), "sw") for T in (0, 2, 1, 3)]
ke2 += [W(lg="sw"), BAR] + MK("bk1")
ke2 += ["ds_read_b128 %s, %s offset:%d" % (v(128 + 16 * dt + 4 * k, 4), v(vSr), 8192 * dt + 1024 * k) for dt in range(2) for k in range(4)]
ke3 = []
for dt in range(2):
    b = 128 + 16 * dt
    for k in range(2): ke3.append("v_pk_add_f32 %s, %s, %s" % (v(b + 2 * k, 2), v(b + 2 * k, 2), v(b + 4 + 2 * k, 2)))
    for k in range(2): ke3.append("v_pk_add_f32 %s, %s, %s" % (v(b + 8 + 2 * k, 2), v(b + 8 + 2 * k, 2), v(b + 12 + 2 * k, 2)))
    for k in range(2): ke3.append("v_pk_add_f32 %s, %s, %s" % (v(b + 2 * k, 2), v(b + 2 * k, 2), v(b + 8 + 2 * k, 2)))
ke3 += pack(128, 128, 144) + [settag(128)] + MK("kvd") + [Issued("kvp")]
g = st_vg(128, vKVs, "0", 0, "kvp", ["kvd"]); g.mark = "kvst"; Q0.append(g)
ism = lambda it: isinstance(it, str) and it.startswith("v_mfma")
def cut(seq, nm):
    c = 0
    for k, it in enumerate(seq):
        if ism(it):
            c += 1
            if c > nm: return seq[:k], seq[k:]
    return seq, []
allq = pipeline(ku + vu + qunits, LA)
pk_, rest = cut(allq, 56); pv_, rest = cut(rest, 56)
qa, rest = cut(rest, opt("qa", 10)); qb, rest = cut(rest, 3); qc, qd = cut(rest, 8)
M += pk_ + [NeedEv("m3")] + spread(pv_, ke, start=2) + MK("kv") + spread(qa, ke1, start=2) + qb + ke2 + qc + ke3 + qd
M += [Need("wb0"), Need("wb1"), W(lg="all"), BAR] + MK("bq")
S.checks.append(poll_check("pA", vPA, None, "cA"))
NPRE = opt("npre", 6)
Q2 += [act_vg(j) for j in range(NPRE)]

ph = phi(accQ(0, 0), vPT)
qe = [NeedEv("bq")] + ph[:8] + ["v_exp_f32_e64 %s, -%s" % (v(vG + rt), v(vPT + (2 + rt) * 4 + 3)) for rt in range(2)]
qe += ph[8:12] + ["v_add_f32 %s, 1.0, %s" % (v(vG + rt), v(vG + rt)) for rt in range(2)] + ph[12:16]
qe += ["v_rcp_f32 %s, %s" % (v(vG + rt), v(vG + rt)) for rt in range(2)] + ph[16:]
for rt in range(2): qe += pack(accQ(0, rt), accQ(0, rt), accQ(1, rt))
qe += ["v_and_b32 %s, 0xffff, %s" % (v(accQ(0, rt) + 3), v(accQ(0, rt) + 3)) for rt in range(2)]
qe += ["v_sub_f32 %s, 1.0, %s" % (v(vOG), v(vG))] + MK("qe")
def o_chain():
    it = []
    for gr in range(2):
        regs = [128 + 16 * gr + 4 * k for k in range(4)]
        it += [Need("kvg%d" % gr), tag_check("cKV%d" % gr, regs, ["s_movk_i32 %s, %d" % (s(sPM), 4096 * gr)] + [ld(regs[k], vKVg, s(sPM), 1024 * k) for k in range(4)])]
        for k in range(4):
            first = gr == 0 and k == 0
            it.append("%s %s, %s, %s, %s" % (MF, v(160, 4), v(vSEL + 2, 4), v(regs[k], 4), "0" if first else v(160, 4)))
            it.append("%s %s, %s, %s, %s" % (MF, v(164, 4), v(vSEL, 4), v(regs[k], 4), "0" if first else v(164, 4)))
    it += DELAY(2) + pack(160, 160, 164) + [("ds_write_b128 %s, %s" % (v(vKFw), v(160, 4)), "kvf"), W(lg="kvf"), BAR] + MK("bk2")
    r, o = lds_win(KVF)
    it += ["ds_read_b128 %s, %s offset:%d" % (v(168 + 4 * k, 4), v(r), o + 1024 * k) for k in range(4)]
    it += DELAY(6)
    O = lambda et, rt: 128 + 8 * rt + 4 * et
    for half in range(2):
        for rt in range(2):
            for et in (1, 0): it.append("%s %s, %s, %s, %s" % (MF, v(O(et, rt), 4), v(168 + 8 * half + 4 * et, 4), v(accQ(0, rt), 4), v(O(et, rt), 4) if half else "0"))
    it += DELAY(2)
    sc = lambda rt: vPT + 2 * rt
    for rt in range(2): it.append("v_add_f32 %s, %s, %s" % (v(sc(rt)), s(sE6), v(O(1, rt) + 3)))
    for rt in range(2): it.append("v_rcp_f32 %s, %s" % (v(sc(rt)), v(sc(rt))))
    for rt in range(2): it.append("v_mul_f32 %s, %s, %s" % (v(sc(rt)), v(sc(rt)), v(vG + rt)))
    for rt in range(2):
        for k in range(4): it.append("v_pk_mul_f32 %s, %s, %s op_sel_hi:[1,0]" % (v(O(0, rt) + 2 * k, 2), v(O(0, rt) + 2 * k, 2), v(sc(rt), 2)))
        it += pack(O(0, rt), O(0, rt), O(1, rt)) + [settag(O(0, rt)), Mark("od%d" % rt)]
    return it + [Issued("o")] + MK("ost")
def o_queue():
    S.Q[1].append(VG([ld(128 + 4 * k, vKVg, "0", 1024 * k) for k in range(4)], "kvg0", at=("kvst", HOP_KV), **FAB))
    S.Q[1].append(VG(["s_movk_i32 %s, 4096" % s(sSO)] + [ld(144 + 4 * k, vKVg, s(sSO), 1024 * k) for k in range(4)], "kvg1", at=("kvst", HOP_KV), **FAB))
    for rt in range(2): S.Q[0].append(st_vg(128 + 8 * rt, vA + rt, s(sKO), 0, "o", ["od%d" % rt]))
S.run(M)

if S.cur is not None: S.force(S.cur.tag)
E("s_cmp_eq_u32 %s, 7" % s(sCS)); E("s_cbranch_scc1 L_idle")
GS = ("n", "w", "cread", "stdata", "vm", "lg", "smem", "smem_regs")
savedG = {k: copy.deepcopy(getattr(G, k)) for k in GS}
savedS = dict(t=S.t, mf=S.mf, ta=S.ta, ev=dict(S.ev), comp=dict(S.comp), last=S.last, fl=list(S.fl), Q=[[(g, g.pos) for g in q] for q in S.Q], checks=list(S.checks), F=list(S.F))

def wo_reads(hh):
    un = WOU[hh // 4]
    return [("ds_read_b64_tr_b16 %s, %s offset:%d" % (a(wof(hh) + 4 * ct + 2 * rd, 2), v(vWBr + 4 * (un // 4) + ct), U(un % 4) + 4096 * (hh % 4) + 1024 * rd), "wor") for ct in range(4) for rd in range(2)]
NRES = (256 - 4 * NL4) // 16
S.F += qe + o_chain()
S.F += [NeedEv("bw3")] + sum((wo_reads(hh) for hh in range(8)), []) + [NeedEv("bw4")] + sum((wo_reads(hh) for hh in range(8, NRES)), []) + [Mark("wor1")]
o_queue()
rest = [act_vg(j) for j in range(NPRE, len(AG))]
WOP = [int(x) for x in opt("wop", "4,8,14,18").split(",")]
ins = {WOP[0]: [wo_vg(0, ["bq"])], WOP[1]: [wo_vg(1, ["bq"])], WOP[2]: [wo_vg(2, ["bw2"])], WOP[3]: [wo_vg(3, ["bw2"])]}
for k, g in enumerate(rest):
    Q2 += ins.get(k, []) + [g]
for gr in range(4):
    it = []
    for k in range(4):
        hh = 4 * gr + k
        it += ["s_mov_b32 %s, %d" % (s(sSO), (56 + hh) * 8192), ld(ol(hh), vA, s(sSO), 0)]
    (Q1 if opt("oprio", 0) else Q2).append(VG(it, "ol%d" % gr, at=("ost", HOP_O), **FAB))
(Q1 if opt("pprio", 0) else Q2).append(VG([ld(prl(ct), vPl, "0", 1024 * ct) for ct in range(4)], "pl", at=("pst", HOP_P), **FAB))
psend = []
for ct in range(4):
    r = accB(1, ct)
    psend += ["v_perm_b32 %s, %s, %s, %s" % (v(r), v(vTH), v(r), s(sP0)), "v_perm_b32 %s, %s, %s, %s" % (v(r + 1), v(vTH), v(r + 1), s(sP1)), Mark("pd%d" % ct)]
    Q0.append(st_vg(r, vPs, "0", 1024 * ct, "pst", ["pd%d" % ct]))
units = []
SEQ = [(n, (0, 1)) for n in range(3)] + AG
BW3, BW4 = opt("bw3", 20), opt("bw4", 34)
for j, (n, rts) in enumerate(SEQ):
    un = W2U[n // 4]
    for cp in range(2):
        k = len(units); pre = []
        if cp == 0 and j == 8: pre = [Need("wb%d" % u) for u in range(2, 7)] + [W(lg="w"), BAR] + MK("bw2")
        if cp == 0 and j == BW3: pre = [Need("wo0"), Need("wo1"), BAR] + MK("bw3")
        if cp == 0 and j == BW4: pre = [Need("wo2"), Need("wo3"), BAR] + MK("bw4")
        reads = [("ds_read_b64_tr_b16 %s, %s offset:%d" % (v(BUF(k) + 4 * t + 2 * rd, 2), v(vWBr + 4 * (un // 4) + 2 * cp + t), U(un % 4) + 4096 * (n % 4) + 1024 * rd), "w")
                 for t in range(2) for rd in range(2)]
        B = lambda rt: v(accH(n, 0, rt), 4) if n < 3 else a(land(ENT[(n, rt)]), 4)
        mf = ["%s %s, %s, %s, %s" % (MF, v(accB(rt, 2 * cp + t), 4), v(BUF(k) + 4 * t, 4), B(rt), v(accB(rt, 2 * cp + t), 4) if n else "0")
              for t in range(2) for rt in rts]
        post = []
        if cp == 1:
            post = MK("km%d" % j) + [Mark("ke%d" % ENT[(n, rt)]) for rt in rts if n >= 3]
            if j + 1 < len(SEQ) and j + 1 >= 3: post.append(Need("al%d" % (j + 1 - 3)))
            if j == 28: post += psend + [Issued("pst")] + MK("pst")
        units.append(Unit(pre, reads, mf, post))
assert 5 <= NB <= 23
M = pipeline(units, 3) + MK("pb")
wl = sum((wo_reads(hh) for hh in range(NRES, 16)), [])
M += wl + [NeedEv("wor1")]
for gr in range(4):
    regs = [ol(4 * gr + k) for k in range(4)]
    rl = []
    for k in range(4): rl += ["s_mov_b32 %s, %d" % (s(sPM), (56 + 4 * gr + k) * 8192), ld(regs[k], vA, s(sPM), 0)]
    M += [Need("ol%d" % gr), tag_check("cO%d" % gr, regs, rl)]
    for k in range(4):
        hh = 4 * gr + k
        for ct in range(4): M.append("%s %s, %s, %s, %s" % (MF, v(accO(ct), 4), a(wof(hh) + 4 * ct, 4), v(ol(hh), 4), v(accO(ct), 4) if hh else "0"))
M += MK("po")
body = []
for ct in range(4): body += ["v_xor_b32 %s, %s, %s" % (v(prl(ct) + k), s(sTB + k), v(prl(ct) + k)) for k in range(2)]
t = v(vT)
body += ["v_or3_b32 %s, %s, %s, %s" % (t, v(prl(0)), v(prl(0) + 1), v(prl(1))), "v_or3_b32 %s, %s, %s, %s" % (t, t, v(prl(1) + 1), v(prl(2))),
         "v_or3_b32 %s, %s, %s, %s" % (t, t, v(prl(2) + 1), v(prl(3))), "v_or_b32 %s, %s, %s" % (t, t, v(prl(3) + 1)),
         "v_and_b32 %s, 0xff, %s" % (t, t), "v_cmp_ne_u32 vcc, 0, %s" % t, "s_cmp_lg_u64 vcc, 0"]
M += [Need("pl"), checked("cP", body, [ld(prl(ct), vPl, "0", 1024 * ct) for ct in range(4)])]
for ct in range(4):
    r = accB(0, ct)
    for k in range(2): M.append("v_pk_add_f32 %s, %s, %s" % (v(r + 2 * k, 2), v(r + 2 * k, 2), v(prl(ct) + 2 * k, 2)))
for ct in range(4):
    r = accB(0, ct)
    for k in range(2): M.append("v_pk_fma_f32 %s, %s, %s, %s op_sel_hi:[1,0,1]" % (v(r + 2 * k, 2), v(r + 2 * k, 2), v(vOG, 2), v(accO(ct) + 2 * k, 2)))
    M.append("v_cvt_pk_bf16_f32 %s, %s, %s" % (v(r), v(r), v(r + 1))); M.append("v_cvt_pk_bf16_f32 %s, %s, %s" % (v(r + 1), v(r + 2), v(r + 3)))
    M.append("buffer_store_dwordx2 %s, %s, %s, 0 offen offset:%d" % (v(r, 2), v(vO), s(SOUT, 4), 32 * ct))
S.run(M); S.drain(); S.mark("end")
print("sim:", " ".join("%s=%d" % (n, t) for t, n in S.log if not n.startswith(("ad", "xr", "od", "pd", "ke")) and not n.endswith("_")), file=sys.stderr)
if "--vlog" in sys.argv: print(" ".join("%s@%d>%d" % (tg, t, c) for t, tg, c in S.vlog), file=sys.stderr)
E("s_cmp_lg_u32 s2, 0"); E("s_cbranch_scc1 L_fin")
E("v_mov_b32 %s, 0" % v(vT))
E("buffer_store_dwordx2 %s, %s, %s, 0 offen sc1" % (v(vN, 2), v(vT), s(SWS, 4)))
G.label("L_fin")
def dump_stamps():
    if not STAMPS: return
    G.raw("  s_memrealtime s[100:101]\n  s_waitcnt vmcnt(0) lgkmcnt(0)\n  s_memrealtime s[4:5]\n  s_waitcnt lgkmcnt(0)")
    G.raw("  s_lshl2_add_u32 s3, s2, %s\n  s_mul_i32 s3, s3, 80\n  s_add_u32 s3, s3, 0x%x\n  v_mov_b32 v2, s3" % (s(sW), STB))
    for k, r in enumerate([KA + 2 * k for k in range(8)] + [100, 4]):
        G.raw("  v_mov_b32 v4, s%d\n  v_mov_b32 v5, s%d\n  buffer_store_dwordx2 v[4:5], v2, %s, 0 offen offset:%d\n  s_nop 1" % (r, r + 1, s(SWS, 4), 8 * k))
dump_stamps()
if "probe" in OPT:
    G.raw("""  s_sub_u32 s6, s%d, s%d
  s_mul_i32 s6, s6, %s
  s_memrealtime s[4:5]
  s_waitcnt lgkmcnt(0)
L_dl:
  s_memrealtime s[8:9]
  s_waitcnt lgkmcnt(0)
  s_sub_u32 s8, s8, s4
  s_cmp_lt_u32 s8, s6
  s_cbranch_scc1 L_dl""" % (KA + 2, KA, OPT["probe"]))
G.label("L_end")
G.raw("  s_endpgm")
G.label("L_idle")
for k in GS: setattr(G, k, savedG[k])
SEL = []
S.t, S.mf, S.ta, S.ev, S.comp, S.last, S.fl = (savedS[k] for k in ("t", "mf", "ta", "ev", "comp", "last", "fl"))
S.cur = None
keep = lambda g: not (g.tag.startswith("al") or g.tag.startswith("wb") or g.tag.startswith("pA"))
for qi in range(3):
    S.Q[qi][:] = [g for g, p in savedS["Q"][qi] if keep(g)]
    for g, p in savedS["Q"][qi]: g.pos = p
S.checks = []
S.F = savedS["F"] + qe + o_chain()
o_queue()
S.drain()
G.raw("  s_endpgm")
emit_spins()
G.label("L_codeend")

hdr = open("cdna_kernels/%s.s.ref" % NAME).read().split("; Override launch geometry")[0]
txt = hdr + """; @launch grid=(256,1,1) block=(256,1,1) lds=163840
.amdgcn_target "amdgcn-amd-amdhsa--gfx950"
.text
.globl {N}_kernel
.p2align 8
.type {N}_kernel,@function
{N}_kernel:
{B}.section .rodata,"a"
.p2align 6
.amdhsa_kernel {N}_kernel
  .amdhsa_next_free_vgpr 512
  .amdhsa_next_free_sgpr 102
  .amdhsa_accum_offset 256
  .amdhsa_group_segment_fixed_size 0
  .amdhsa_kernarg_size 88
  .amdhsa_user_sgpr_count 2
  .amdhsa_user_sgpr_kernarg_segment_ptr 1
  .amdhsa_system_sgpr_workgroup_id_x 1
.end_amdhsa_kernel
""".format(N=NAME, B=G.text())
if "--cyc" in sys.argv: txt = txt.replace("s_memrealtime", "s_memtime")
open(OUTF, "w").write(txt)
print("stats", G.stats, "nops", G.nops, "maxvm", G.maxvm, "stamps", stn, file=sys.stderr)
open(OUTF + ".names", "w").write(" ".join(stn + ["-"] * (8 - len(stn)) + ["end", "drain"]))
```

```python
import re
TRANS = ("v_exp_f32", "v_rcp_f32", "v_log_f32", "v_rsq_f32", "v_sqrt_f32")
RE_REG = re.compile(r"^-?\|?([vas])(\d+)\|?$")
RE_RNG = re.compile(r"^-?\|?([vas])\[(\d+):(\d+)\]\|?$")

def regs_of(tok):
    tok = tok.strip()
    m = RE_REG.match(tok)
    if m: return [(m.group(1), int(m.group(2)))]
    m = RE_RNG.match(tok)
    if m: return [(m.group(1), k) for k in range(int(m.group(2)), int(m.group(3)) + 1)]
    if tok == "vcc": return [("s", 106), ("s", 107)]
    if tok == "vcc_lo": return [("s", 106)]
    if tok == "vcc_hi": return [("s", 107)]
    if tok == "m0": return [("m0", 0)]
    if tok in ("exec", "exec_lo", "exec_hi"): return [("exec", 0)]
    return []

class Ins:
    def __init__(self, text):
        self.text = text
        t = text.split(";")[0].strip()
        sp = t.split(None, 1)
        self.op = op = sp[0]
        rest = sp[1] if len(sp) > 1 else ""
        ops, depth, cur = [], 0, ""
        for ch in rest:
            if ch == "[": depth += 1
            if ch == "]": depth -= 1
            if ch == "," and depth == 0:
                ops.append(cur.strip()); cur = ""
            else: cur += ch
        if cur.strip(): ops.append(cur.strip())
        mods = ""
        if ops:
            l = ops[-1].split(None, 1)
            ops[-1] = l[0]
            mods = l[1] if len(l) > 1 else ""
        self.ops, self.mods = ops, mods
        R = [regs_of(o) for o in ops]
        self.dst, self.src, self.C, self.data = [], [], [], []
        self.dpp = False
        if op.startswith("v_mfma"):
            self.kind = "mfma"; self.dst = R[0]; self.src = R[1] + R[2]; self.C = R[3]
        elif op.startswith("v_"):
            self.kind = "trans" if op.replace("_e64", "").replace("_e32", "") in TRANS else "valu"
            self.dst = R[0]; self.src = sum(R[1:], [])
            if "dpp" in op or "row_" in mods or "quad_perm" in mods: self.dpp = True
            if op.startswith("v_permlane"): self.dpp = True; self.dst = R[0] + R[1]; self.src = R[0] + R[1]
            if op.startswith("v_fmac") or op.startswith("v_writelane"): self.src += R[0]
        elif op.startswith("ds_read"):
            self.kind = "dsr"; self.dst = R[0]; self.src = R[1]
        elif op.startswith("ds_write"):
            self.kind = "dsw"; self.src = sum(R, [])
        elif op.startswith("buffer_load"):
            if re.search(r"\blds\b", mods):
                self.kind = "dma"; self.src = sum(R, []) + [("m0", 0)]
            else:
                self.kind = "vld"; self.dst = R[0]; self.src = sum(R[1:], [])
        elif op.startswith("buffer_store"):
            self.kind = "vst"; self.src = sum(R, []); self.data = R[0]
        elif op.startswith("s_load") or op.startswith("s_memrealtime") or op.startswith("s_memtime"):
            self.kind = "smem"; self.dst = R[0]; self.src = sum(R[1:], [])
        elif op in ("s_waitcnt", "s_barrier", "s_nop", "s_endpgm", "s_branch", "s_setprio") or op.startswith("s_cbranch"):
            self.kind = "ctl"
        elif op.startswith("s_cmp"):
            self.kind = "salu"; self.src = sum(R, [])
        elif op.startswith("s_"):
            self.kind = "salu"; self.dst = R[0]; self.src = sum(R[1:], [])
        else:
            raise ValueError("unknown op " + text)

class Gen:
    def __init__(self):
        self.out = []
        self.n = 0
        self.w = {}
        self.cread = {}
        self.stdata = {}
        self.vm = []
        self.lg = []
        self.smem = False
        self.smem_regs = set()
        self.optional = False
        self.nops = 0
        self.maxvm = 0
        self.stats = {}
    def raw(self, s): self.out.append(s)
    def label(self, s): self.out.append(s + ":")
    def comment(self, s): self.out.append("  ; " + s)
    def _emit(self, text, states=1):
        self.out.append("  " + text); self.n += states
    def nop(self, k):
        while k > 0:
            c = min(k, 8); self._emit("s_nop %d" % (c - 1), c); k -= c; self.nops += c
    def _waitcnt(self, vi, li):
        parts = []
        if vi is not None:
            n = sum(0 if e[2] else 1 for e in self.vm[vi + 1:])
            assert n <= 63
            parts.append("vmcnt(%d)" % n); self.vm = ([e for e in self.vm[:vi + 1] if not e[2]] if self.optional else []) + self.vm[vi + 1:]
        if li is not None:
            if li == "all" or self.smem:
                parts.append("lgkmcnt(0)")
                if self.optional: self.lg = [e for e in self.lg if not e[2]]
                else: self.lg = []; self.smem = False; self.smem_regs = set()
            else:
                n = sum(0 if e[2] else 1 for e in self.lg[li + 1:])
                n = min(n, 15)
                parts.append("lgkmcnt(%d)" % n); self.lg = ([e for e in self.lg[:li + 1] if not e[2]] if self.optional else []) + self.lg[li + 1:]
        if parts: self._emit("s_waitcnt " + " ".join(parts))
    def wait(self, vm=None, lg=None):
        def find(q, tags):
            if tags is None: return None
            if tags == "all": return len(q) - 1 if q else None
            if isinstance(tags, str): tags = [tags]
            idx = None
            for k, e in enumerate(q):
                if e[0] in tags: idx = k
            return idx
        vi = find(self.vm, vm); li = find(self.lg, lg)
        if lg == "all" and self.smem: li = "all"
        self._waitcnt(vi, li)
    def E(self, text, tag=None):
        I = Ins(text)
        k = I.kind
        self.stats[k] = self.stats.get(k, 0) + 1
        touched = set(I.src) | set(I.dst) | set(I.C)
        vi = li = None
        for idx, e in enumerate(self.vm):
            if e[1] & touched: vi = idx
        for idx, e in enumerate(self.lg):
            if e[1] & touched: li = idx
        if self.smem and (self.smem_regs & touched): li = "all"
        if k in ("vld", "vst", "dma") and len(self.vm) >= 62:
            vi = max(vi if vi is not None else -1, len(self.vm) - 62)
        self._waitcnt(vi, li)
        need = 0
        def req(state, ws):
            nonlocal need
            d = self.n - state - 1
            if ws - d > need: need = ws - d
        isvalu = k in ("valu", "trans")
        mem = k in ("dsr", "dsw", "vld", "vst", "dma")
        for r in set(I.src) | set(I.C):
            if r not in self.w: continue
            st, pk, key = self.w[r]
            if pk in ("valu", "trans"):
                if r[0] in "va":
                    if k == "mfma": req(st, 2)
                    if isvalu and I.dpp: req(st, 2)
                    if I.op.startswith("v_readfirstlane") or I.op.startswith("v_readlane"): req(st, 1)
                    if pk == "trans" and k == "valu": req(st, 1)
                elif r[0] == "s":
                    if isvalu: req(st, 2)
                    if k in ("vld", "vst", "dma"): req(st, 5)
            elif pk == "mfma":
                if k == "mfma":
                    if r in I.src: req(st, 8)
                    if r in I.C and tuple(I.C) != key: req(st, 6)
                elif isvalu or mem: req(st, 8)
            elif pk == "salu" and r[0] == "m0" and k == "dma": req(st, 1)
        for r in I.dst:
            if r in self.w:
                st, pk, key = self.w[r]
                if pk == "mfma" and (isvalu or k in ("dsr", "vld")): req(st, 8)
                if pk == "mfma" and k == "mfma" and tuple(I.dst) != key: req(st, 8)
            if r in self.cread and (isvalu or k in ("dsr", "vld")): req(self.cread[r], 3)
            if r in self.stdata: req(self.stdata[r], 2 if isvalu else 1)
        if need > 0: self.nop(need)
        st = self.n
        self._emit(text)
        for r in I.dst: self.w[r] = (st, k, tuple(I.dst))
        for r in I.C: self.cread[r] = st
        if k == "vst" and len(I.data) >= 3:
            for r in I.data: self.stdata[r] = st
        if k in ("vld", "vst", "dma"):
            self.vm.append([tag, set(I.dst), self.optional]); self.maxvm = max(self.maxvm, len(self.vm))
        if k in ("dsr", "dsw"): self.lg.append([tag, set(I.dst), self.optional])
        if k == "smem": self.smem = True; self.smem_regs |= set(I.dst)
    def run(self, items):
        for it in items:
            if callable(it): it()
            elif isinstance(it, tuple): self.E(it[0], it[1])
            else: self.E(it)
    def text(self): return "\n".join(self.out) + "\n"

def v(n, k=1): return "v%d" % n if k == 1 else "v[%d:%d]" % (n, n + k - 1)
def a(n, k=1): return "a%d" % n if k == 1 else "a[%d:%d]" % (n, n + k - 1)
def s(n, k=1): return "s%d" % n if k == 1 else "s[%d:%d]" % (n, n + k - 1)

def spread(main, fill, start=0):
    ism = lambda it: (isinstance(it, str) and it.startswith("v_mfma")) or (isinstance(it, tuple) and it[0].startswith("v_mfma"))
    nm = sum(1 for it in main if ism(it)) - start
    out, done, m = [], 0, -start
    for it in main:
        out.append(it)
        if ism(it):
            m += 1
            if m > 0:
                tgt = (len(fill) * m + nm - 1) // nm if nm > 0 else len(fill)
                while done < tgt: out.append(fill[done]); done += 1
    out += fill[done:]
    return out
```

```python
import sys, copy, struct
sys.path.insert(0, "work")
from asmgen import *
from sched3 import *
NAME = "gated_mix__linear_attn_block__dense_activation_mish__prompt"
SEL = [x[5:].split(",") for x in sys.argv if x.startswith("--st=")]
SEL = SEL[0] if SEL else []
STAMPS = bool(SEL)
OPT = dict(x[2:].split("=") for x in sys.argv if x.startswith("--") and "=" in x and not x.startswith("--st="))
def opt(k, d): return type(d)(OPT.get(k, d))
OUTF = [x for x in sys.argv[1:] if not x.startswith("--")][0]
def fbits(x): return "0x%08x" % struct.unpack("<I", struct.pack("<f", x))[0]
LOG2E = 1.4426950408889634
LAT_COLD, LAT_L2, LAT_FAB, LAT_ST = opt("cold", 1300), opt("l2", 700), opt("fab", 1400), opt("lst", 1300)
SVC_COLD, SVC_FAB = opt("svcc", 90), opt("svcf", 75)
HOP_PW, HOP_A, HOP_KV, HOP_O, HOP_P = opt("hpw", 1200), opt("ha", 900), opt("hkv", 1200), opt("ho", 1200), opt("hp", 900)
NLAND = opt("nland", 10)

FL, KVB, PWB, ACTB, STB, PRB = 0x1000, 0x40000, 0x140000, 0x300000, 0xD00000, 0xE00000
OOB = 0x40000000
U = lambda n: 16384 * n
STG = U(9); BIASL = U(9) + 8192; KVF = U(9) + 12288
W2U = [4, 5, 3, 6, 7, 8, 0]; WOU = [1, 2, 4, 5]
SX, SWQ, SW1, SW2, SWO, SWS, SOUT, SB1 = 8, 12, 16, 20, 24, 28, 32, 36
sN = 40; sTB = 42
sI, sH, sW, sJ4, sJ, sLA, sLB, sKH, sCS, sCNT = 44, 45, 46, 47, 48, 49, 50, 51, 52, 53
sT = 54
sMC = 60; sPC = 62; sE6 = 64; sQ = 65; sM8 = 66; sFF = 68; sTH = 69; sKA = 70
sKO = 74; sWL = 75; sAK = 76; sSO = 78; sWK = 79; sSO3 = 80; sWOw = 81; sPM = 82; sP0 = 3; sP1 = 4
KA = 84
vL = 1
vX = 2; vW1 = 6; vXr = 10; vW1r = 12; vR = 16; vRr = 17; vP = 19; vB = 20; vBr = 21
vPT = 2
vTabW = 22; vL16 = 23
vPW = 26; vA = 27; vFW = 29; vPP = 30; vPA = 31; vWB = 32; vWO = 36; vO = 38; vPs = 39; vWBr = 40
vN = 52; vT = 54; vKVs = 55; vKVg = 56; vSw = 57; vSr = 58; vKFw = 59; vPl = 60; vG = 62
L3, L7, LG, L5, LQ, L03, LGP, LN = range(192, 200)
t0_, t1_, t2_, t3_, t4_ = range(200, 205)
accH = lambda b, t, rt: 64 + ((b * 2 + t) * 2 + rt) * 4
bias = lambda b, t: 128 + (b * 2 + t) * 4
accK = lambda dt, rt: 160 + (dt * 2 + rt) * 4
accV = lambda dt, rt: 176 + (dt * 2 + rt) * 4
accQ = lambda dt, rt: 192 + (dt * 2 + rt) * 4
vC6 = 208; vOG = 210; vTabA = 212; vTH = 213; vSEL = 216; vPoll = 222
BUF = lambda n: 224 + 8 * (n % 4)
xf = lambda ks, rt: (ks * 2 + rt) * 4
accB = lambda rt, ct: accH(ct, 1, rt)
accO = lambda ct: [96, 100, 112, 116][ct]
prl = lambda ct: [64, 68, 80, 84][ct]
land = lambda n: 256 - 8 * NLAND + 8 * ((n - 3) % NLAND)
wof = lambda hh: 16 * hh
ol = lambda hh: 144 + 4 * hh

G = Gen(); E = G.E
nst = [0]; stn = ["start"]
def stamp(name):
    if name in SEL:
        k = nst[0]; nst[0] += 1
        assert k < 8
        stn.append(name)
        E("s_memrealtime %s" % s(KA + 2 * k, 2))
def MK(name): return [Mark(name), Call(lambda: stamp(name))]
def W(vm=None, lg=None): return Call(lambda: G.wait(vm=vm, lg=lg), 4)
def DELAY(n): return [Call(lambda: None, 16) for _ in range(n)]
BAR = "s_barrier"
MF = "v_mfma_f32_16x16x32_bf16"
spins = []
def checked(name, body, reload):
    k = len(spins)
    def pre(): G.label("L_chk%d" % k)
    def post(): G.label("L_ok%d" % k); stamp(name)
    spins.append(reload)
    return Atom([Call(pre)] + body + ["s_cbranch_scc1 L_spin%d" % k, Call(post), Mark(name)])
def emit_spins():
    for k, reload in enumerate(spins):
        G.label("L_spin%d" % k)
        G.raw("  s_cmp_eq_u32 %s, 0" % s(sCNT))
        G.raw("  s_cbranch_scc1 L_ok%d" % k)
        G.raw("  s_sub_u32 %s, %s, 1" % (s(sCNT), s(sCNT)))
        for r in reload: G.raw("  " + r)
        G.raw("  s_waitcnt vmcnt(0)")
        G.raw("  s_branch L_chk%d" % k)
def poll_vg(ptag, vaddr, at):
    return VG(["buffer_load_dwordx2 %s, %s, %s, 0 offen sc1" % (v(vPoll, 2), v(vaddr), s(SWS, 4))], ptag, lat=LAT_FAB, at=at)
def poll_check(ptag, vaddr, mask, name):
    body = ["v_cmp_ne_u64 vcc, %s, %s" % (v(vPoll, 2), v(vN, 2))]
    if mask is None: body.append("s_cmp_lg_u64 vcc, 0")
    else: body += ["s_and_b32 vcc_lo, vcc_lo, 0x%x" % (mask & 0xffffffff), "s_and_b32 vcc_hi, vcc_hi, 0x%x" % (mask >> 32), "s_cmp_lg_u64 vcc, 0"]
    def f():
        G.wait(vm=ptag)
        S.emit_plain(checked(name, body, ["buffer_load_dwordx2 %s, %s, %s, 0 offen sc1" % (v(vPoll, 2), v(vaddr), s(SWS, 4))]))
    return Check(ptag, f, name + "_")
def flag_vg(typ, tags, name, after=()):
    it = [W(vm=list(tags))]; so = "0"
    if typ: it.append("s_mov_b32 %s, %d" % (s(sSO3), typ * 32768)); so = s(sSO3)
    it.append(Call(lambda: stamp(name)))
    it.append("buffer_store_dwordx2 %s, %s, %s, %s offen sc1" % (v(vN, 2), v(vFW), s(SWS, 4), so))
    return VG(it, name, after=after, lat=LAT_ST, done_tag=tags, mark=name)
def tag_check(name, regs, reload):
    t = v(vT)
    body = ["v_xor_b32 %s, %s, %s" % (v(r + 3), s(sTH), v(r + 3)) for r in regs]
    body += ["v_or3_b32 %s, %s, %s, %s" % (t, v(regs[0] + 3), v(regs[1] + 3), v(regs[2] + 3)), "v_or_b32 %s, %s, %s" % (t, t, v(regs[3] + 3)),
             "v_cmp_lt_u32 vcc, %s, %s" % (s(sFF), t), "s_cmp_lg_u64 vcc, 0"]
    return checked(name, body, reload)

class Unit:
    def __init__(self, pre, reads, mf, post=()): self.pre, self.reads, self.mf, self.post = pre, reads, mf, list(post)
def pipeline(units, L):
    seq = []; N = len(units)
    for n in range(-L, N):
        rd = units[n + L] if n + L < N else None
        mm = units[n] if n >= 0 else None
        if rd: seq += rd.pre
        R = rd.reads if rd else []
        M = mm.mf if mm else []
        for k in range(max(len(R), len(M))):
            if k < len(M): seq.append(M[k])
            if k < len(R): seq.append(R[k])
        if mm: seq += mm.post
    return seq

E("s_cmp_ge_u32 s2, 256"); E("s_cbranch_scc1 L_end")
E("s_load_dwordx16 %s, s[0:1], 0" % s(KA, 16))
E("s_load_dwordx2 %s, s[0:1], 80" % s(SWS, 2))
E("s_load_dwordx2 %s, s[0:1], 64" % s(SOUT, 2))
if STAMPS: E("s_memrealtime s[100:101]")
G.raw("  s_getpc_b64 s[4:5]\nL_pc:")
E("s_bfe_u32 s3, s2, 0x30003"); E("s_lshl_b32 s3, s3, 6")
E("v_lshrrev_b32 %s, 6, v0" % v(vT)); E("v_and_or_b32 v3, v0, 15, s3"); E("v_lshl_add_u32 v2, %s, 4, v3" % v(vT))
E("v_lshlrev_b32 v2, 6, v2"); G.raw("  v_min_u32 v2, L_codeend-L_pc-4, v2")
G.raw("  v_add_co_u32 v2, vcc, s4, v2\n  v_mov_b32 v3, s5\n  v_and_b32 v1, 63, v0\n  v_addc_co_u32 v3, vcc, 0, v3, vcc\n  global_load_dword %s, v[2:3], off" % v(vPoll))
G.vm.append(["cpf", {("v", vPoll)}, False])
E("v_readfirstlane_b32 %s, %s" % (s(sW), v(vT)))
E("s_bfe_u32 %s, s2, 0x20001" % s(sT)); E("s_bfe_u32 %s, s2, 0x20003" % s(sT + 1))
E("s_lshl2_add_u32 %s, %s, %s" % (s(sI), s(sT), s(sT + 1)))
E("s_and_b32 %s, s2, 1" % s(sKH)); E("s_lshr_b32 %s, s2, 5" % s(sCS))
E("s_lshl3_add_u32 %s, %s, %s" % (s(sH), s(sKH), s(sCS)))
for srd, n in ((SWQ, 1204224), (SX, 1835008)):
    E("s_mov_b32 %s, %d" % (s(srd + 2), n)); E("s_mov_b32 %s, 0x20000" % s(srd + 3))
E("s_lshl_b32 %s, %s, 12" % (s(sQ), s(sW)))
E("v_lshrrev_b32 %s, 3, v1" % v(L3)); E("v_and_b32 %s, 7, v1" % v(L7)); E("v_lshrrev_b32 %s, 4, v1" % v(LG)); E("v_lshrrev_b32 %s, 5, v1" % v(L5))
E("v_bfe_u32 %s, v1, 2, 2" % v(LQ)); E("v_and_b32 %s, 3, v1" % v(L03)); E("v_and_b32 %s, 1, %s" % (v(LGP), v(LG))); E("v_and_b32 %s, 15, v1" % v(LN))
T0, T1, T2, T3, T4 = (v(x) for x in (t0_, t1_, t2_, t3_, t4_))
E("v_lshl_add_u32 %s, %s, 2, %s" % (T0, v(L5), v(LQ))); E("v_lshl_add_u32 %s, %s, 3, %s" % (T0, v(LGP), T0))
E("v_mul_u32_u24 %s, 2688, %s" % (T0, T0))
E("v_lshlrev_b32 %s, 1, %s" % (T1, v(LGP))); E("v_xor_b32 %s, %s, %s" % (T1, T1, v(L03))); E("v_lshl_add_u32 %s, %s, 4, %s" % (T0, T1, T0))
E("s_add_u32 %s, %s, 1" % (s(sT), s(sW))); E("s_mul_i32 %s, %s, 896" % (s(sT), s(sT)))
E("s_cmp_eq_u32 %s, 2" % s(sW)); E("s_cselect_b32 %s, 0, %s" % (s(sT), s(sT)))
E("s_cmp_eq_u32 %s, 3" % s(sW)); E("s_cselect_b32 %s, 0x%x, %s" % (s(sT), OOB, s(sT)))
E("s_mul_i32 %s, %s, %d" % (s(sT + 1), s(sI), 32 * 2688)); E("s_add_u32 %s, %s, %s" % (s(sT), s(sT), s(sT + 1)))
E("s_mul_i32 %s, %s, 56" % (s(sT + 1), s(sH))); E("s_add_u32 %s, %s, %s" % (s(sT), s(sT), s(sT + 1)))
E("v_add_u32 %s, %s, %s" % (v(vR), s(sT), T0))
E("s_lshl2_add_u32 %s, %s, %s" % (s(sT), s(sI), s(sW))); E("s_lshl1_add_u32 %s, %s, %s" % (s(sT), s(sT), s(sKH))); E("s_mul_i32 %s, %s, %d" % (s(sT), s(sT), 16 * 896))
E("s_mul_i32 %s, %s, %d" % (s(sT + 1), s(sKH), -28672)); E("s_add_u32 %s, %s, 12288" % (s(sT + 1), s(sT + 1)))
E("v_mul_u32_u24 %s, 896, %s" % (T0, v(L3))); E("v_xor_b32 %s, %s, %s" % (T1, v(L7), v(LG))); E("v_add_u32 %s, %s, %s" % (T0, s(sT), T0))
E("v_lshl_add_u32 %s, %s, 4, %s" % (v(vX), T1, T0)); E("v_xor_b32 %s, 4, %s" % (T1, T1)); E("v_lshl_add_u32 %s, %s, 4, %s" % (T1, T1, T0))
E("v_add_u32 %s, 6144, %s" % (v(vX + 1), T1)); E("v_add_u32 %s, %s, %s" % (v(vX + 2), s(sT + 1), v(vX))); E("v_add_u32 %s, %s, %s" % (v(vX + 3), s(sT + 1), v(vX + 1)))
E("s_lshr_b32 %s, %s, 1" % (s(sT + 1), s(sQ))); E("s_add_u32 m0, %s, %d" % (s(sT + 1), STG))
E("s_mov_b32 %s, %d" % (s(sSO), 16 * 2688 - 1024))
G.wait(lg="all")
E("s_mov_b64 %s, %s" % (s(SWQ, 2), s(KA + 2, 2))); E("s_mov_b64 %s, %s" % (s(SX, 2), s(KA, 2)))
S = Sched(G, t0=opt("t0", 950), cap=opt("cap", 16))
S.slow, S.slow_until = 1.5, 2600
COLD = dict(lat=LAT_COLD, svc=SVC_COLD); FAB = dict(lat=LAT_FAB, svc=SVC_FAB)
def x_vg(st):
    it = [W(lg="x%d" % (st - 3))] if st >= 3 else []
    it.append("s_add_u32 m0, %s, %d" % (s(sQ), U(st % 3)))
    so = "0"
    if st: it.append("s_movk_i32 %s, %d" % (s(sSO), 128 * st)); so = s(sSO)
    else: it.append("s_nop 0")
    for u in range(4): it.append("buffer_load_dwordx4 %s, %s, %s offen offset:%d lds" % (v(vX + u), s(SX, 4), so, 1024 * u))
    return VG(it, "x%d" % st, after=["xr%d" % (st - 3)] if st >= 3 else [], **COLD)
TWO = opt("two", 0); BE = opt("be", 0)
vW1s = 160
ALOC = [U(3), U(4), U(5), U(3) + 2048, U(4) + 2048, U(5) + 2048, U(3)]
BLOC = [U(4), U(5), U(3) + 2048, U(1), U(1) + 2048, U(2), U(2) + 2048]
if TWO: W2U = [1, 5, 3, 6, 7, 8, 0]; WOU = [4, 2, 1, 5]
QA, QB = (0, 4) if TWO else (1, 2)
def w_vg(st):
    it = []; so = "0"
    for line in range(1 if TWO else 2):
        it.append("s_add_u32 m0, %s, %d" % (s(sQ), ALOC[st] if TWO else U(3 + st % 3) + 2048 * line))
        if st and line == 0: it.append("s_mov_b32 %s, %d" % (s(sSO), 64 * 3584 * st)); so = s(sSO)
        elif TWO: it.append("s_nop 0")
        for rd in range(2): it.append("buffer_load_dwordx4 %s, %s, %s offen offset:%d lds" % (v(vW1 + 2 * line + rd), s(SW1, 4), so, 1024 * rd))
    if TWO: return VG(it, "w%d" % st, after=["wad"] + (["xr%d" % (st - 3)] if st >= 3 else []) + (["b1"] if st == 6 else []), **COLD)
    return VG(it, "w%d" % st, after=["wad"] + (["b%d" % (st - 2)] if st >= 3 else []), **COLD)
def wB_vg(st):
    it = [W(lg="x4")] if st == 3 else [W(lg="x5")] if st == 5 else []
    so = "0"
    it.append("s_add_u32 m0, %s, %d" % (s(sQ), BLOC[st]))
    if st: it.append("s_mov_b32 %s, %d" % (s(sSO), 64 * 3584 * st)); so = s(sSO)
    else: it.append("s_nop 0")
    for rd in range(2): it.append("buffer_load_dwordx4 %s, %s, %s offen offset:%d lds" % (v(vW1 + 2 + rd), s(SW1, 4), so, 1024 * rd))
    return VG(it, "wB%d" % st, after=["wad", "xr3"] + {0: ["b2"], 1: ["b3"], 2: ["b4"], 3: ["xr4"], 4: ["xr4"], 5: ["xr5"], 6: ["xr5"]}.get(st, []), **COLD)
def w2_vg(u, after):
    it = ["s_add_u32 %s, %s, %d" % (s(sWL), s(sW), 4 * u), "v_readlane_b32 %s, %s, %s" % (s(sWK), v(vTabW), s(sWL)), "s_add_u32 m0, %s, %d" % (s(sQ), U(W2U[u]))]
    for k in range(4): it.append("buffer_load_dwordx4 %s, %s, %s offen offset:%d lds" % (v(vWB + k), s(SW2, 4), s(sWK), 1024 * k))
    return VG(it, "wb%d" % u, after=["late"] + list(after), **COLD)
def wo_vg(u, after):
    it = ["s_add_u32 m0, %s, %d" % (s(sQ), U(WOU[u])), "s_add_u32 %s, %s, %d" % (s(sSO), s(sWOw), u * 4 * 28 * 896)]
    for k, r in enumerate((vWB, vWO, vWB + 2, vWO + 1)): it.append("buffer_load_dwordx4 %s, %s, %s offen offset:%d lds" % (v(r), s(SWO, 4), s(sSO), 1024 * k))
    return VG(it, "wo%d" % u, after=after, **COLD)
def kv_lds(ks): return U(6) + 4096 * ks if ks < 12 else STG + 4096 * (ks - 12)
def q_lds(f): return U(QA) + 1024 * f if f < 16 else U(QB) + 4096 * ((f - 16) // 3) + 1024 * ((f - 16) % 3)
def pw_vg(setup, cnt, after, lg=None, tag="pwl"):
    it = ([W(lg=lg)] if lg else []) + setup
    for k in range(cnt): it.append("buffer_load_dwordx4 %s, %s, %s offen offset:%d sc1 lds" % (v(vPW), s(SWS, 4), s(sSO), 1024 * k))
    return VG(it, tag, after=["cPW_"] + ([opt("pwa", "b5")] if TWO else []) + after, **FAB)
def act_vg(n, after):
    it = ["buffer_load_dwordx4 %s, %s, %s, %s offen sc1" % (a(land(n) + 4 * rt, 4), v(vA + rt), s(SWS, 4), s(sAK + (n & 1))) for rt in range(2)]
    if n < 26: it.append("v_readlane_b32 %s, %s, %d" % (s(sAK + (n & 1)), v(vTabA), n + 2))
    return VG(it, "al%d" % n, after=after, **FAB)
def ld(reg, vaddr, so, off): return "buffer_load_dwordx4 %s, %s, %s, %s offen offset:%d sc1" % (v(reg, 4), v(vaddr), s(SWS, 4), so, off)
def st_vg(reg, vaddr, so, off, tag, after): return VG(["buffer_store_dwordx4 %s, %s, %s, %s offen offset:%d sc1" % (v(reg, 4), v(vaddr), s(SWS, 4), so, off)], tag, after=after, lat=LAT_ST)

Q0, Q1, Q2 = S.Q
Q2.append(VG(["buffer_load_dwordx4 %s, %s, 0 offen lds" % (v(vR), s(SWQ, 4)), "buffer_load_dwordx4 %s, %s, %s offen offset:1024 lds" % (v(vR), s(SWQ, 4), s(sSO))], "rp", **COLD))
Q2 += [x_vg(0), w_vg(0)]
Q2.append(VG(["s_lshr_b32 %s, %s, 2" % (s(sSO), s(sQ)), "s_add_u32 m0, %s, %d" % (s(sSO), BIASL), "s_nop 0",
              "buffer_load_dwordx4 %s, %s, 0 offen lds" % (v(vB), s(SB1, 4))], "bias", after=["wad"], **COLD))
x1 = x_vg(1); x1.after = ("wad",)
x2 = x_vg(2); x2.after = ("pwdata",) if opt("x2late", 1) else ("wad",)
w2_ = w_vg(2); w2_.after = x2.after
Q2 += [x1, w_vg(1), x2, w2_]
for st in range(3, 7):
    Q2 += [x_vg(st), w_vg(st)]
    if TWO and 0 <= st - (6 - BE) < BE: Q2.append(wB_vg(st - (6 - BE)))
KVP = opt("kvp", 7)
if TWO: Q2 += [wB_vg(st) for st in range(BE, KVP)]
def su(lds, mem): return ["s_add_u32 m0, %s, %d" % (s(sQ), lds), "s_add_u32 %s, %s, %d" % (s(sSO), s(sQ), mem)]
Q2 += [pw_vg(su(U(6), 0), 4, []), pw_vg(su(U(7), 16384), 4, []), pw_vg(su(U(8), 32768), 4, []),
       pw_vg(["s_lshr_b32 %s, %s, 1" % (s(sSO), s(sQ)), "s_add_u32 m0, %s, %d" % (s(sSO), STG), "s_add_u32 %s, %s, 49152" % (s(sSO), s(sSO))], 2, ["b0"])]
if TWO: Q2 += [wB_vg(st) for st in range(KVP, 7)]
PQ = "pwq" if opt("pq", 0) else "pwl"
PQA = [opt("pqa", "wad")]; W2A = [opt("w2a", "wad")]
Q2 += [
       pw_vg(su(U(QA), 57344), 4, ["xr6" if TWO else "xr4"] + PQA, "x6" if TWO else "x4", PQ),
       pw_vg(["s_add_u32 m0, %s, %d" % (s(sQ), U(QB)), "s_mul_i32 %s, %s, 3072" % (s(sSO), s(sW)), "s_add_u32 %s, %s, %d" % (s(sSO), s(sSO), 57344 + 16384)], 3, ["c1" if TWO else "xr5"] + PQA, None if TWO else "x5", PQ)]
Q2 += ([w2_vg(2, ["c1"] + W2A), w2_vg(1, ["c1"] + W2A), w2_vg(0, ["b7"])] + ([wo_vg(1, ["b7", "late"])] if opt("wo1e", 1) else []) if TWO else [w2_vg(0, ["b5"] + W2A), w2_vg(1, ["b6"] + W2A), w2_vg(2, ["b7"])]) + [w2_vg(3, ["bk1"]), w2_vg(4, ["bk1"]), w2_vg(5, ["bk1"])]

M = []
m = M.append
m("s_mov_b64 %s, %s" % (s(SW1, 2), s(KA + 8, 2))); m("s_mov_b64 %s, %s" % (s(SB1, 2), s(KA + 10, 2)))
m("s_lshr_b32 %s, %s, 2" % (s(sJ4), s(sH))); m("s_and_b32 %s, %s, 3" % (s(sJ), s(sH)))
m("s_lshl_b32 %s, %s, 2" % (s(sT), s(sJ)))
m("s_lshr_b32 %s, 0x5420, %s" % (s(sLA), s(sT))); m("s_and_b32 %s, %s, 15" % (s(sLA), s(sLA)))
m("s_lshr_b32 %s, 0x6331, %s" % (s(sLB), s(sT))); m("s_and_b32 %s, %s, 15" % (s(sLB), s(sLB)))
for srd, n in ((SW1, 1605632), (SB1, 3584)):
    m("s_mov_b32 %s, %d" % (s(srd + 2), n)); m("s_mov_b32 %s, 0x20000" % s(srd + 3))
m("v_and_b32 %s, 3, %s" % (T0, v(L3))); m("v_lshl_add_u32 %s, %s, 3, %s" % (T0, v(L5), T0)); m("v_mul_u32_u24 %s, 3584, %s" % (T0, T0))
m("v_lshlrev_b32 %s, 1, %s" % (T1, v(LG))); m("v_xor_b32 %s, %s, %s" % (T2, T1, v(L7)))
m("s_mul_i32 %s, %s, 896" % (s(sT + 1), s(sJ4)))
m("s_lshl_b32 %s, %s, 7" % (s(sT + 2), s(sLA))); m("s_add_u32 %s, %s, %s" % (s(sT + 2), s(sT + 2), s(sT + 1)))
m("s_lshl_b32 %s, %s, 7" % (s(sT + 3), s(sLB))); m("s_add_u32 %s, %s, %s" % (s(sT + 3), s(sT + 3), s(sT + 1)))
m("s_mul_i32 %s, %s, %d" % (s(sT), s(sW), 16 * 3584)); m("v_add_u32 %s, %s, %s" % (T0, s(sT), T0))
m("s_cmp_eq_u32 %s, 2" % s(sJ)); m("s_cselect_b32 %s, 4, 0" % s(sT + 4))
m("v_lshl_add_u32 %s, %s, 4, %s" % (T1, T2, T0)); m("v_add_u32 %s, %s, %s" % (v(vW1), s(sT + 2), T1))
m("v_xor_b32 %s, %s, %s" % (T1, s(sT + 4), T2)); m("v_lshl_add_u32 %s, %s, 4, %s" % (T1, T1, T0)); m("v_add_u32 %s, %s, %s" % (v(vW1 + 2), s(sT + 3), T1))
m("v_add_u32 %s, %d, %s" % (v(vW1 + 1), 4 * 3584 - 1024, v(vW1))); m("v_add_u32 %s, %d, %s" % (v(vW1 + 3), 4 * 3584 - 1024, v(vW1 + 2)))
m("s_sub_u32 %s, %s, 128" % (s(sT + 3), s(sT + 3)))
m("v_xor_b32 %s, %s, %s" % (T0, s(sT + 4), v(LN))); m("v_lshl_add_u32 %s, %s, 4, %s" % (T0, T0, s(sT + 3))); m("v_lshl_add_u32 %s, %s, 4, %s" % (T1, v(LN), s(sT + 2)))
m("v_cmp_gt_u32 vcc, 8, %s" % v(LN)); m("s_mov_b32 %s, 0x10000000" % s(SWS + 2)); m("s_mov_b32 %s, 0x20000" % s(SWS + 3))
m("v_cndmask_b32 %s, %s, %s, vcc" % (v(vB), T0, T1))
M += MK("wad")
m("s_lshl_b32 %s, %s, 6" % (s(sT), s(sI))); m("s_min_u32 %s, %s, 832" % (s(sT), s(sT)))
m("s_add_u32 %s, %s, %s" % (s(KA + 14), s(KA + 14), s(sT))); m("s_addc_u32 %s, %s, 0" % (s(KA + 15), s(KA + 15)))
m("s_mov_b64 %s, %s" % (s(SW2, 2), s(KA + 12, 2))); m("s_mov_b64 %s, %s" % (s(SWO, 2), s(KA + 4, 2)))
m("s_load_dwordx2 %s, %s, 0" % (s(sN, 2), s(SWS, 2)))
m("s_load_dwordx16 %s, %s, 0" % (s(KA, 16), s(KA + 14, 2)))
m("s_mov_b32 %s, 0x88888888" % s(sM8)); m("s_mov_b32 %s, 0x88888888" % s(sM8 + 1))
m("v_lshlrev_b32 %s, 4, v1" % v(vL16))
m("s_lshr_b32 %s, %s, 1" % (s(sT), s(sQ))); m("s_add_u32 %s, %s, %d" % (s(sT), s(sT), STG))
m("v_lshl_add_u32 %s, %s, 10, %s" % (T0, v(L5), s(sT))); m("v_lshl_add_u32 %s, %s, 8, %s" % (T0, v(LGP), T0)); m("v_lshl_add_u32 %s, %s, 6, %s" % (T0, v(LQ), T0)); m("v_lshl_add_u32 %s, %s, 3, %s" % (T0, v(L03), T0))
m("v_lshl_add_u32 %s, %s, 5, %s" % (v(vRr), v(LGP), T0)); m("v_xor_b32 %s, 32, %s" % (v(vRr + 1), v(vRr)))
m("s_mul_i32 %s, %s, 86016" % (s(sT), s(sH))); m("s_add_u32 %s, %s, 0x%x" % (s(sT), s(sT), PWB))
m("v_add_u32 %s, %s, %s" % (v(vPW), s(sT), v(vL16)))
m("s_lshl_b32 %s, %s, 12" % (s(sT + 1), s(sI))); m("s_lshr_b32 %s, %s, 1" % (s(sT + 2), s(sQ))); m("s_add_u32 %s, %s, %s" % (s(sT + 1), s(sT + 1), s(sT + 2)))
m("s_lshl_b32 %s, %s, 11" % (s(sT + 2), s(sI))); m("s_add_u32 %s, %s, 57344" % (s(sT + 2), s(sT + 2)))
m("s_cmp_eq_u32 %s, 2" % s(sW)); m("s_cselect_b32 %s, %s, %s" % (s(sT + 1), s(sT + 2), s(sT + 1)))
m("s_cmp_eq_u32 %s, 3" % s(sW)); m("s_cselect_b32 %s, 0x%x, %s" % (s(sT + 1), OOB, s(sT + 1)))
m("s_cmp_ge_u32 %s, 14" % s(sI)); m("s_cselect_b32 %s, 0x%x, %s" % (s(sT + 1), OOB, s(sT + 1)))
m("v_add_u32 %s, %s, %s" % (v(vP), s(sT + 1), v(vPW)))
m("v_lshrrev_b32 %s, 1, %s" % (T0, v(LN))); m("v_xor_b32 %s, %s, %s" % (T0, T0, v(LG))); m("v_lshl_add_u32 %s, %s, 7, %s" % (T1, v(LN), s(sQ)))
m("v_lshl_add_u32 %s, %s, 4, %s" % (v(vXr), T0, T1)); m("v_xor_b32 %s, 64, %s" % (v(vXr + 1), v(vXr)))
m("v_bfe_u32 %s, v1, 2, 3" % T0); m("v_lshlrev_b32 %s, 7, %s" % (T3, T0)); m("v_lshl_add_u32 %s, %s, 3, %s" % (T3, v(L03), T3))
m("v_and_b32 %s, 3, %s" % (T0, v(L3))); m("v_lshl_add_u32 %s, %s, 5, %s" % (T3, T0, T3))
m("v_lshl_add_u32 %s, %s, 12, %s" % (T0, v(L5), T3)); m("v_add_u32 %s, %d, %s" % (v(vW1r), U(3), T0))
for t in range(1, 4): m("v_xor_b32 %s, %d, %s" % (v(vW1r + t), 32 * t, v(vW1r)))
m("s_lshr_b32 %s, %s, 2" % (s(sT), s(sQ))); m("s_add_u32 %s, %s, %d" % (s(sT), s(sT), BIASL)); m("v_lshl_add_u32 %s, %s, 3, %s" % (v(vBr), v(LG), s(sT)))
for k in range(4): m("v_mov_b32 %s, 0" % v(80 + k))
m(Atom([W(lg="all"), "s_cmp_lg_u32 %s, 2" % s(sW), "s_cbranch_scc1 L_nog"] +
       ["v_writelane_b32 %s, %s, %d" % (v(80 + k), s(KA + 4 * g_ + k), 16 * g_ + 3) for g_ in range(4) for k in range(4)] +
       ["v_mov_b32_dpp %s, %s row_newbcast:3 row_mask:0xf bank_mask:0xf" % (v(80 + k), v(80 + k)) for k in range(4)] + [Call(lambda: G.label("L_nog"))]))
if STAMPS:
    def _f(): E("s_mov_b64 %s, s[100:101]" % s(KA, 2)); nst[0] = 1
    m(Call(_f))
M += MK("pc")
m(Need("rp"))
for t in (1, 0):
    for rd in range(2): m("ds_read_b64_tr_b16 %s, %s offset:%d" % (v(84 + 4 * t + 2 * rd, 2), v(vRr + t), 512 * rd))
for q_ in (3, 2, 1):
    for k in range(4): m("v_mov_b32_dpp %s, %s row_shr:%d row_mask:0xf bank_mask:0x%x" % (v(88 + k), v(88 + k), q_, 1 << q_))
for k in range(4): m("v_cndmask_b32_e64 %s, %s, %s, %s" % (v(88 + k), v(88 + k), v(80 + k), s(sM8, 2)))
M += MK("pwdata")
Q0 += [st_vg(84, vP, "0", 0, "pw", ["pwdata"]), st_vg(88, vP, "0", 1024, "pw", ["pwdata"])]
m(Issued("pw"))
m(Need("bias"))
for b in range(4):
    for t in range(2): m("ds_read_b64 %s, %s offset:%d" % (v(bias(b, t) + 2, 2), v(vBr), 64 * b + 32 * t))
for b in range(4):
    for t in range(2):
        q = bias(b, t)
        m("v_lshlrev_b32 %s, 16, %s" % (v(q), v(q + 2))); m("v_and_b32 %s, 0xffff0000, %s" % (v(q + 1), v(q + 2)))
        m("v_lshlrev_b32 %s, 16, %s" % (v(q + 2), v(q + 3))); m("v_and_b32 %s, 0xffff0000, %s" % (v(q + 3), v(q + 3)))
M = glue(M); m = M.append
D = [NeedEv("pwdata")]; d = D.append
d("s_add_u32 %s, %s, 0x7f4a7c15" % (s(sN), s(sN))); d("s_addc_u32 %s, %s, 0x9e3779b9" % (s(sN + 1), s(sN + 1)))
d("v_mov_b32 %s, %s" % (v(vN), s(sN))); d("v_mov_b32 %s, %s" % (v(vN + 1), s(sN + 1)))
d("s_lshl4_add_u32 %s, %s, %s" % (s(sT), s(sI), s(sH))); d("s_lshl4_add_u32 %s, %s, %s" % (s(sT + 1), s(sT), s(sW)))
d("s_lshl_b32 %s, %s, 3" % (s(sT + 1), s(sT + 1))); d("s_add_u32 %s, %s, %d" % (s(sT + 1), s(sT + 1), FL))
d("v_min_u32 %s, 1, v1" % T0); d("v_lshl_add_u32 %s, %s, 30, %s" % (v(vFW), T0, s(sT + 1)))
d("s_lshl_b32 %s, %s, 7" % (s(sT), s(sH))); d("s_add_u32 %s, %s, %d" % (s(sT), s(sT), FL))
d("v_lshrrev_b32 %s, 2, v1" % T0); d("v_lshl_add_u32 %s, %s, 11, %s" % (T0, T0, s(sT))); d("v_lshl_add_u32 %s, %s, 3, %s" % (v(vPP), v(L03), T0))
d("s_mov_b32 %s, 200000" % s(sCNT))
d(Mark("late1"))
d("s_mov_b32 %s, %s" % (s(sMC), fbits(LOG2E))); d("s_mov_b32 %s, %s" % (s(sMC + 1), fbits(0.5 ** 0.5)))
d("s_mov_b32 %s, %s" % (s(sPC), fbits(LOG2E))); d("s_mov_b32 %s, %s" % (s(sPC + 1), fbits(-1e-6 * LOG2E)))
d("s_mov_b32 %s, %s" % (s(sE6), fbits(1e-6))); d("s_mov_b32 %s, 0xffff" % s(sFF))
d("s_lshl_b32 %s, %s, 16" % (s(sTH), s(sN))); d("v_mov_b32 %s, %s" % (v(vTH), s(sTH)))
d("s_and_b32 %s, %s, 0xff" % (s(sTB), s(sN))); d("s_bfe_u32 %s, %s, 0x80008" % (s(sTB + 1), s(sN)))
d("s_mov_b32 %s, 0x03020106" % s(sP0)); d("s_mov_b32 %s, 0x03020107" % s(sP1))
d("s_cmp_eq_u32 %s, 7" % s(sCS))
d("s_cselect_b32 %s, 0, 1605632" % s(SW2 + 2)); d("s_cselect_b32 %s, 0, 401408" % s(SWO + 2))
d("s_mov_b32 %s, 0x20000" % s(SW2 + 3)); d("s_mov_b32 %s, 0x20000" % s(SWO + 3))
d("s_mov_b32 %s, 1835008" % s(SOUT + 2)); d("s_mov_b32 %s, 0x20000" % s(SOUT + 3))
d("v_add_u32 %s, 65536, %s" % (v(vL16 + 1), v(vL16))); d("v_add_u32 %s, 65536, %s" % (v(vL16 + 2), v(vL16 + 1)))
d("s_mul_i32 %s, %s, %d" % (s(sT), s(sI), 72 * 8192)); d("s_add_u32 %s, %s, 0x%x" % (s(sT), s(sT), ACTB))
d("s_lshl1_add_u32 %s, %s, %s" % (s(sT + 1), s(sW), s(sKH))); d("s_lshl_b32 %s, %s, 10" % (s(sT + 1), s(sT + 1))); d("s_add_u32 %s, %s, %s" % (s(sT + 1), s(sT + 1), s(sT)))
d("v_add_u32 %s, %s, %s" % (v(vA), s(sT + 1), v(vL16))); d("v_xor_b32 %s, 1024, %s" % (v(vA + 1), v(vA)))
d("s_mul_i32 %s, %s, 14" % (s(sT), s(sJ4)))
d("s_lshl1_add_u32 %s, %s, %s" % (s(sKA), s(sLA), s(sT))); d("s_add_u32 %s, %s, 1" % (s(sKA + 1), s(sKA)))
d("s_lshl1_add_u32 %s, %s, %s" % (s(sKA + 2), s(sLB), s(sT))); d("s_add_u32 %s, %s, 1" % (s(sKA + 3), s(sKA + 2)))
d("s_cmp_eq_u32 %s, 2" % s(sJ)); d("s_cselect_b32 %s, %s, %s" % (s(sKA + 2), s(sKA + 3), s(sKA + 2))); d("s_cselect_b32 %s, 0x%x, %s" % (s(sKA + 3), OOB >> 13, s(sKA + 3)))
d("s_cmp_eq_u32 %s, 1" % s(sJ)); d("s_cselect_b32 %s, 0x%x, %s" % (s(sKA + 3), OOB >> 13, s(sKA + 3)))
d("s_min_u32 %s, %s, %s" % (s(sT), s(sKA), s(sKA + 2)))
d("s_mul_i32 %s, %s, 28" % (s(sT + 1), s(sKH))); d("s_sub_u32 %s, %s, %s" % (s(sT), s(sT), s(sT + 1))); d("s_add_u32 %s, %s, 3" % (s(sT), s(sT)))
d("s_and_b32 %s, %s, 3" % (s(sT + 2), s(sI))); d("s_mul_i32 %s, %s, %d" % (s(sT + 2), s(sT + 2), opt("rho", 6))); d("s_add_u32 %s, %s, 22" % (s(sT + 2), s(sT + 2)))
d("v_add_u32 %s, %s, v1" % (T0, s(sT + 2)))
for _ in range(2): d("v_subrev_u32 %s, 25, %s" % (T1, T0)); d("v_min_u32 %s, %s, %s" % (T0, T0, T1))
d("v_add_u32 %s, %s, %s" % (T0, s(sT), T0)); d("v_subrev_u32 %s, 28, %s" % (T1, T0)); d("v_min_u32 %s, %s, %s" % (T0, T0, T1))
d("v_add_u32 %s, %s, %s" % (T0, s(sT + 1), T0))
for k in range(3): d("v_writelane_b32 %s, %s, %d" % (T0, s(sKA + k), k))
d("v_lshlrev_b32 %s, 13, %s" % (v(vTabA), T0)); d("v_mul_u32_u24 %s, 28672, %s" % (v(vTabW), T0))
for k in range(4): d("s_lshl_b32 %s, %s, 13" % (s(sKA + k), s(sKA + k)))
d("v_readlane_b32 %s, %s, 3" % (s(sAK + 1), v(vTabA))); d("v_readlane_b32 %s, %s, 4" % (s(sAK), v(vTabA)))
d("s_lshl_b32 %s, %s, 13" % (s(sKO), s(sH))); d("s_add_u32 %s, %s, %d" % (s(sKO), s(sKO), 56 * 8192))
d("s_mul_i32 %s, %s, %d" % (s(sWOw), s(sW), 28 * 896))
d("s_lshl1_add_u32 %s, %s, %s" % (s(sT), s(sI), s(sKH))); d("s_lshl_b32 %s, %s, 10" % (s(sT), s(sT))); d("s_lshl3_add_u32 %s, %s, %s" % (s(sT), s(sW), s(sT)))
d("s_add_u32 %s, %s, %d" % (s(sT), s(sT), FL + 32768)); d("v_lshl_add_u32 %s, %s, 7, %s" % (v(vPA), v(L7), s(sT)))
d("s_lshl_b32 %s, %s, 7" % (s(sT), s(sCS))); d("v_mul_u32_u24 %s, 896, %s" % (T0, v(L3))); d("v_lshl_add_u32 %s, %s, 4, %s" % (T0, T2, T0)); d("v_add_u32 %s, %s, %s" % (v(vWB), s(sT), T0))
d("v_add_u32 %s, %d, %s" % (v(vWB + 1), 16 * 896 - 1024, v(vWB))); d("v_add_u32 %s, %d, %s" % (v(vWB + 2), 8 * 896 - 2048, v(vWB))); d("v_add_u32 %s, %d, %s" % (v(vWB + 3), 24 * 896 - 3072, v(vWB)))
d("v_mul_u32_u24 %s, 896, %s" % (T0, v(L5))); d("v_sub_u32 %s, %s, %s" % (v(vWO), v(vWB + 1), T0)); d("v_add_u32 %s, %d, %s" % (v(vWO + 1), 6 * 896 - 2048, v(vWO)))
d("v_lshl_add_u32 %s, %s, 11, %s" % (v(vWBr), v(L5), T3))
for ct in range(1, 4): d("v_xor_b32 %s, %d, %s" % (v(vWBr + ct), 32 * ct, v(vWBr)))
for k in range(4, 12): d("v_add_u32 %s, 65536, %s" % (v(vWBr + k), v(vWBr + k - 4)))
d("s_and_b32 %s, %s, 1" % (s(sT + 1), s(sW))); d("s_lshl1_add_u32 %s, %s, %s" % (s(sT), s(sH), s(sT + 1))); d("s_lshl_b32 %s, %s, 14" % (s(sT), s(sT))); d("s_add_u32 %s, %s, 0x%x" % (s(sT), s(sT), KVB))
d("s_lshr_b32 %s, %s, 1" % (s(sT + 2), s(sW))); d("s_lshl_b32 %s, %s, 13" % (s(sT + 3), s(sT + 2))); d("s_add_u32 %s, %s, %s" % (s(sT + 3), s(sT + 3), s(sT)))
d("v_add_u32 %s, %s, %s" % (v(vKVg), s(sT + 3), v(vL16)))
d("s_lshl_b32 %s, %s, 10" % (s(sT + 3), s(sI))); d("s_add_u32 %s, %s, %s" % (s(sT + 3), s(sT + 3), s(sT))); d("s_lshl_b32 %s, %s, 30" % (s(sT + 2), s(sT + 2))); d("s_add_u32 %s, %s, %s" % (s(sT + 3), s(sT + 3), s(sT + 2)))
d("v_add_u32 %s, %s, %s" % (v(vKVs), s(sT + 3), v(vL16)))
d("s_lshr_b32 %s, %s, 2" % (s(sT), s(sQ))); d("v_add_u32 %s, %s, %s" % (v(vSw), s(sT), v(vL16)))
d("s_add_u32 %s, %s, %d" % (s(sT), s(sT), KVF)); d("v_add_u32 %s, %s, %s" % (v(vKFw), s(sT), v(vL16)))
d("s_lshl_b32 %s, %s, 12" % (s(sT + 1), s(sT + 1))); d("v_add_u32 %s, %s, %s" % (v(vSr), s(sT + 1), v(vL16)))
d("s_lshl4_add_u32 %s, %s, %s" % (s(sT), s(sI), s(sH))); d("s_lshl_b32 %s, %s, 14" % (s(sT), s(sT))); d("s_add_u32 %s, %s, %s" % (s(sT), s(sT), s(sQ))); d("s_add_u32 %s, %s, 0x%x" % (s(sT), s(sT), PRB))
d("v_add_u32 %s, %s, %s" % (v(vPs), s(sT), v(vL16))); d("v_xor_b32 %s, 0x%x, %s" % (v(vPl), 8 << 14, v(vPs)))
d("s_lshl2_add_u32 %s, %s, %s" % (s(sT), s(sI), s(sW))); d("s_lshl1_add_u32 %s, %s, %s" % (s(sT), s(sT), s(sKH))); d("s_mul_i32 %s, %s, %d" % (s(sT), s(sT), 16 * 896))
d("s_lshl_b32 %s, %s, 7" % (s(sT + 1), s(sCS))); d("s_add_u32 %s, %s, %s" % (s(sT), s(sT), s(sT + 1)))
d("v_mul_u32_u24 %s, 896, %s" % (T0, v(LN))); d("v_lshl_add_u32 %s, %s, 3, %s" % (T0, v(LG), T0)); d("v_add_u32 %s, %s, %s" % (v(vO), s(sT), T0))
for k in range(4): d("v_mov_b32 %s, %s" % (v(vC6 + k), s(sE6)))
d("v_and_b32 %s, 1, v1" % T0); d("v_lshlrev_b32 %s, 4, %s" % (T0, T0)); d("v_mov_b32 %s, 0x3f80" % T1); d("v_lshlrev_b32 %s, %s, %s" % (T0, T0, T1))
d("v_lshrrev_b32 %s, 1, %s" % (T1, v(LN))); d("v_lshlrev_b32 %s, 1, %s" % (T4, v(LG))); d("v_sub_u32 %s, %s, %s" % (T1, T1, T4))
for k in (0, 1, 4, 5): d("v_mov_b32 %s, 0" % v(vSEL + k))
for k in range(2): d(Atom(["v_cmp_eq_u32 vcc, %d, %s" % (k, T1), "s_nop 1", "v_cndmask_b32 %s, %s, %s, vcc" % (v(vSEL + 2 + k), v(vSEL), T0)]))
if TWO:
    for k in range(4): d("v_subrev_u32 %s, %d, %s" % (v(vW1s + k), U(3), v(vW1r + k)))
D += MK("late")
S.F += glue(D)

units = []
for st in range(7):
    for kk in range(2):
        ks = 2 * st + kk
        for b in range(2 if TWO else 4):
            n = len(units); pre = []
            if kk == 0 and b == 0:
                pre.append(Need("x%d" % st))
                for k2 in range(2):
                    for rt in range(2): pre.append(("ds_read_b128 %s, %s offset:%d" % (a(xf(2 * st + k2, rt), 4), v(vXr + k2), U(st % 3) + 2048 * rt), "x%d" % st))
                pre += [Mark("xr%d" % st), Need("w%d" % st), W(lg="w"), BAR] + MK("b%d" % st)
            reads = [("ds_read_b64_tr_b16 %s, %s offset:%d" % (v(BUF(n) + 4 * t + 2 * rd, 2), v(vW1r + 2 * (b & 1) + t), (ALOC[st] - U(3) if TWO else U(st % 3)) + 8192 * kk + 2048 * (b >> 1) + 1024 * rd), "w")
                     for t in range(2) for rd in range(2)]
            mf = ["%s %s, %s, %s, %s" % (MF, v(accH(b, t, rt), 4), v(BUF(n) + 4 * t, 4), a(xf(ks, rt), 4), v(bias(b, t) if ks == 0 else accH(b, t, rt), 4))
                  for t in range(2) for rt in range(2)]
            units.append(Unit(pre, reads, mf))
if TWO:
    if opt("sep", 1): M += pipeline(units, 2) + MK("p1"); units = []
    else: units[-1].post = MK("p1")
    CG = {0: [0, 1, 2], 3: [3, 4], 5: [5, 6]} if opt("cg", 0) == 0 else {0: [0], 1: [1, 2], 3: [3, 4], 5: [5, 6]}
    CN = {0: "c0", 1: "c0b", 3: "c1", 5: "c2"}
    for st in range(7):
        for kk in range(2):
            ks = 2 * st + kk
            for b in range(2, 4):
                n = len(units); pre = []
                if kk == 0 and b == 2 and st in CG:
                    pre = [Need("wB%d" % q) for q in CG[st]] + [W(lg="w"), BAR] + MK(CN[st])
                rb, ro = (vW1r, BLOC[st] - U(3)) if BLOC[st] >= U(3) else (vW1s, BLOC[st])
                reads = [("ds_read_b64_tr_b16 %s, %s offset:%d" % (v(BUF(n) + 4 * t + 2 * rd, 2), v(rb + 2 * (b & 1) + t), ro + 8192 * kk + 1024 * rd), "w")
                         for t in range(2) for rd in range(2)]
                mf = ["%s %s, %s, %s, %s" % (MF, v(accH(b, t, rt), 4), v(BUF(n) + 4 * t, 4), a(xf(ks, rt), 4), v(bias(b, t) if ks == 0 else accH(b, t, rt), 4))
                      for t in range(2) for rt in range(2)]
                units.append(Unit(pre, reads, mf))
LA = 2
P2B = pipeline(units, LA)
Q0 += [flag_vg(0, ("pw",), "fPW", after=["late1"]), poll_vg("pPW", vPP, ("fPW", HOP_PW))]
S.checks.append(poll_check("pPW", vPP, 0x0077777777777777, "cPW"))

def mish(b):
    T = [128, 164, 128, 144][b] if TWO else 128 + 16 * (b & 1); H = accH(b, 0, 0); it = []
    for k in range(8): it.append("v_pk_fma_f32 %s, %s, %s, -0.5 op_sel_hi:[1,0,0]" % (v(T + 2 * k, 2), v(H + 2 * k, 2), s(sMC, 2)))
    for k in range(16): it.append("v_exp_f32 %s, %s" % (v(T + k), v(T + k)))
    for k in range(8): it.append("v_pk_add_f32 %s, %s, %s op_sel:[0,1] op_sel_hi:[1,1]" % (v(T + 2 * k, 2), v(T + 2 * k, 2), s(sMC, 2)))
    for k in range(8): it.append("v_pk_fma_f32 %s, %s, %s, 0.5 op_sel_hi:[1,1,0]" % (v(T + 2 * k, 2), v(T + 2 * k, 2), v(T + 2 * k, 2)))
    for k in range(16): it.append("v_rcp_f32 %s, %s" % (v(T + k), v(T + k)))
    for k in range(8): it.append("v_pk_fma_f32 %s, %s, %s, %s neg_lo:[1,0,0] neg_hi:[1,0,0]" % (v(T + 2 * k, 2), v(H + 2 * k, 2), v(T + 2 * k, 2), v(H + 2 * k, 2)))
    for rt in range(2):
        for t in range(2):
            for k in range(2):
                src = T + (t * 2 + rt) * 4 + 2 * k
                it.append("v_cvt_pk_bf16_f32 %s, %s, %s" % (v(accH(b, 0, rt) + 2 * t + k), v(src), v(src + 1)))
        it.append(Mark("ad%d%d" % (b, rt)))
        Q0.append(st_vg(accH(b, 0, rt), vA + rt, s(sKA + b), 0, "act", ["ad%d%d" % (b, rt)]))
    return it + MK("m%d" % b)
SPR = opt("spr", 0)
if SPR == 0: M += P2B + MK("p2")
elif SPR == 1: M += [NeedEv("late"), NeedEv("m0")] + spread(P2B, mish(1)) + MK("p2"); S.F += [NeedEv("p1")] + mish(0) + [NeedEv("p2")] + mish(2) + mish(3)
if SPR == 0: S.F += ([NeedEv("p1")] + mish(0) + mish(1) + [NeedEv("p2")] if TWO else [NeedEv("p2")] + mish(0) + mish(1)) + mish(2) + mish(3)
Q0 += [flag_vg(1, ("act",), "fA"), poll_vg("pA", vPA, (opt("paev", "fA"), HOP_A))]

def lds_win(addr): return vL16 + addr // 65536, addr % 65536
units = []
for ks in range(14):
    for sec in range(2):
        n = len(units); pre = []
        if n == 0: pre = [NeedEv("late"), NeedEv(opt("mfirst", "m3")), Need("pwl"), W(lg="all"), BAR] + MK("b7")
        if PQ == "pwq" and n == opt("pqn", 22): pre = [Need("pwq"), BAR] + MK("b8")
        reads = []
        for t in range(2):
            r, o = lds_win(kv_lds(ks) + 2048 * sec + 1024 * t)
            reads.append(("ds_read_b128 %s, %s offset:%d" % (v(BUF(n) + 4 * t, 4), v(r), o), "w"))
        acc = accV if sec else accK
        mf = []
        for t in range(2):
            for rt in range(2):
                c = v(acc(t, rt), 4) if ks else ("0" if sec else v(vC6, 4))
                mf.append("%s %s, %s, %s, %s" % (MF, v(acc(t, rt), 4), a(xf(ks, rt), 4), v(BUF(n) + 4 * t, 4), c))
        units.append(Unit(pre, reads, mf))
M += pipeline(units, LA) + MK("kv")
PKS = opt("pks", 0); vCE = 20
def padd(d_, a_, b_):
    if PKS: return ["v_add_f32 %s, %s, %s" % (v(d_ + j), v(a_ + j), v(b_ + j)) for j in range(2)]
    return ["v_pk_add_f32 %s, %s, %s" % (v(d_, 2), v(a_, 2), v(b_, 2))]
def phi(A, T):
    it = []
    if PKS:
        for k in range(16): it.append("v_fma_f32 %s, %s, %s, %s" % (v(T + k), v(A + k), s(sPC), v(vCE)))
    else:
        for k in range(8): it.append("v_pk_fma_f32 %s, %s, %s, %s op_sel:[0,0,1] op_sel_hi:[1,0,1]" % (v(T + 2 * k, 2), v(A + 2 * k, 2), s(sPC, 2), s(sPC, 2)))
    for k in range(16): it.append("v_exp_f32_e64 %s, %s clamp" % (v(T + k), v(T + k)))
    for k in range(16): it.append("v_max_f32 %s, %s, %s" % (v(A + k), s(sE6), v(A + k)))
    for k in range(8): it += padd(A + 2 * k, A + 2 * k, T + 2 * k)
    return it
def pack(d_, lo, hi):
    return ["v_cvt_pk_bf16_f32 %s, %s, %s" % (v(d_), v(lo), v(lo + 1)), "v_cvt_pk_bf16_f32 %s, %s, %s" % (v(d_ + 1), v(lo + 2), v(lo + 3)),
            "v_cvt_pk_bf16_f32 %s, %s, %s" % (v(d_ + 2), v(hi), v(hi + 1)), "v_cvt_pk_bf16_f32 %s, %s, %s" % (v(d_ + 3), v(hi + 2), v(hi + 3))]
def settag(r): return "v_and_or_b32 %s, %s, %s, %s" % (v(r + 3), v(r + 3), s(sFF), v(vTH))
qunits = []
for ks in range(14):
    n = len(qunits); reads = []
    for t in range(2):
        r, o = lds_win(q_lds(2 * ks + t))
        reads.append(("ds_read_b128 %s, %s offset:%d" % (v(BUF(n) + 4 * t, 4), v(r), o), "w"))
    mf = ["%s %s, %s, %s, %s" % (MF, v(accQ(t, rt), 4), v(BUF(n) + 4 * t, 4), a(xf(ks, rt), 4), v(accQ(t, rt), 4) if ks else v(vC6, 4)) for t in range(2) for rt in range(2)]
    qunits.append(Unit([], reads, mf))
ke = (["v_mov_b32 %s, %s" % (v(vCE), s(sPC + 1))] if PKS else []) + phi(accK(0, 0), vPT)
for dt in range(2): ke += pack(accV(dt, 0), accV(dt, 0), accV(dt, 1))
ke.append("v_mov_b32 %s, 0x3f803f80" % v(vT))
for dt in range(2): ke += pack(accK(dt, 0), accK(dt, 0), accK(dt, 1))
for k in range(4): ke.append("v_cndmask_b32_e64 %s, %s, %s, %s" % (v(accV(1, 0) + k), v(accV(1, 0) + k), v(vT), s(sM8, 2)))
KVT = [accK(0, 1), accK(1, 1), accV(0, 1), accV(1, 1)]
for dt in range(2):
    for et in range(2): ke.append("%s %s, %s, %s, 0" % (MF, v(KVT[2 * dt + et], 4), v(accK(dt, 0), 4), v(accV(et, 0), 4)))
ke2 = [NeedEv("m3")] + [("ds_write_b128 %s, %s offset:%d" % (v(vSw), v(KVT[T], 4), 4096 * T), "sw") for T in range(4)]
ke2 += [W(lg="sw"), BAR] + MK("bk1")
ke2 += ["ds_read_b128 %s, %s offset:%d" % (v(128 + 16 * dt + 4 * k, 4), v(vSr), 8192 * dt + 1024 * k) for dt in range(2) for k in range(4)]
ke3 = []
for dt in range(2):
    b = 128 + 16 * dt
    for k in range(2): ke3 += padd(b + 2 * k, b + 2 * k, b + 4 + 2 * k)
    for k in range(2): ke3 += padd(b + 8 + 2 * k, b + 8 + 2 * k, b + 12 + 2 * k)
    for k in range(2): ke3 += padd(b + 2 * k, b + 2 * k, b + 8 + 2 * k)
ke3 += pack(128, 128, 144) + [settag(128)] + MK("kvd") + [Issued("kvp")]
g = st_vg(128, vKVs, "0", 0, "kvp", ["kvd"]); g.mark = "kvst"; Q0.append(g)
qs = pipeline(qunits, LA)
ism = lambda it: isinstance(it, str) and it.startswith("v_mfma")
def cut(seq, nm):
    c = 0
    for k, it in enumerate(seq):
        if ism(it):
            c += 1
            if c > nm: return seq[:k], seq[k:]
    return seq, []
qa, rest = cut(qs, opt("qa", 36)); qb, rest = cut(rest, 4); qc, qd = cut(rest, 8)
M += spread(qa, ke, start=2) + qb + ke2 + qc + ke3 + qd
M += [Need("wb0"), Need("wb1"), Need("wb2"), W(lg="all"), BAR] + MK("bq")
S.checks.append(poll_check("pA", vPA, None, "cA"))
NPRE = min(NLAND, opt("npre", 6))
Q2 += [act_vg(n, ["cA_"]) for n in range(3, 3 + NPRE)]

ph = phi(accQ(0, 0), vPT)
P0 = 16 if PKS else 8
qe = [NeedEv("bq")] + ph[:P0] + ["v_exp_f32_e64 %s, -%s" % (v(vG + rt), v(vPT + (2 + rt) * 4 + 3)) for rt in range(2)]
qe += ph[P0:P0 + 4] + ["v_add_f32 %s, 1.0, %s" % (v(vG + rt), v(vG + rt)) for rt in range(2)] + ph[P0 + 4:P0 + 8]
qe += ["v_rcp_f32 %s, %s" % (v(vG + rt), v(vG + rt)) for rt in range(2)] + ph[P0 + 8:]
for rt in range(2): qe += pack(accQ(0, rt), accQ(0, rt), accQ(1, rt))
qe += ["v_and_b32 %s, 0xffff, %s" % (v(accQ(0, rt) + 3), v(accQ(0, rt) + 3)) for rt in range(2)]
qe += ["v_sub_f32 %s, 1.0, %s" % (v(vOG), v(vG))] + MK("qe")
def o_chain():
    it = []
    for gr in range(2):
        regs = [128 + 16 * gr + 4 * k for k in range(4)]
        it += [Need("kvg%d" % gr), tag_check("cKV%d" % gr, regs, ["s_movk_i32 %s, %d" % (s(sPM), 4096 * gr)] + [ld(regs[k], vKVg, s(sPM), 1024 * k) for k in range(4)])]
        for k in range(4):
            first = gr == 0 and k == 0
            it.append("%s %s, %s, %s, %s" % (MF, v(160, 4), v(vSEL + 2, 4), v(regs[k], 4), "0" if first else v(160, 4)))
            it.append("%s %s, %s, %s, %s" % (MF, v(164, 4), v(vSEL, 4), v(regs[k], 4), "0" if first else v(164, 4)))
    it += DELAY(2) + pack(160, 160, 164) + [("ds_write_b128 %s, %s" % (v(vKFw), v(160, 4)), "kvf"), W(lg="kvf"), BAR] + MK("bk2")
    r, o = lds_win(KVF)
    it += ["ds_read_b128 %s, %s offset:%d" % (v(168 + 4 * k, 4), v(r), o + 1024 * k) for k in range(4)]
    it += DELAY(6)
    O = lambda et, rt: 128 + 8 * rt + 4 * et
    for half in range(2):
        for rt in range(2):
            for et in (1, 0): it.append("%s %s, %s, %s, %s" % (MF, v(O(et, rt), 4), v(168 + 8 * half + 4 * et, 4), v(accQ(0, rt), 4), v(O(et, rt), 4) if half else "0"))
    it += DELAY(2)
    sc = lambda rt: vPT + 2 * rt
    for rt in range(2): it.append("v_add_f32 %s, %s, %s" % (v(sc(rt)), s(sE6), v(O(1, rt) + 3)))
    for rt in range(2): it.append("v_rcp_f32 %s, %s" % (v(sc(rt)), v(sc(rt))))
    for rt in range(2): it.append("v_mul_f32 %s, %s, %s" % (v(sc(rt)), v(sc(rt)), v(vG + rt)))
    for rt in range(2):
        if PKS:
            for k in range(8): it.append("v_mul_f32 %s, %s, %s" % (v(O(0, rt) + k), v(O(0, rt) + k), v(sc(rt))))
        else:
            for k in range(4): it.append("v_pk_mul_f32 %s, %s, %s op_sel_hi:[1,0]" % (v(O(0, rt) + 2 * k, 2), v(O(0, rt) + 2 * k, 2), v(sc(rt), 2)))
        it += pack(O(0, rt), O(0, rt), O(1, rt)) + [settag(O(0, rt)), Mark("od%d" % rt)]
    return it + [Issued("o")] + MK("ost")
def o_queue():
    S.Q[1].append(VG([ld(128 + 4 * k, vKVg, "0", 1024 * k) for k in range(4)], "kvg0", at=("kvst", HOP_KV), **FAB))
    S.Q[1].append(VG(["s_movk_i32 %s, 4096" % s(sSO)] + [ld(144 + 4 * k, vKVg, s(sSO), 1024 * k) for k in range(4)], "kvg1", at=("kvst", HOP_KV), **FAB))
    for rt in range(2): S.Q[0].append(st_vg(128 + 8 * rt, vA + rt, s(sKO), 0, "o", ["od%d" % rt]))
S.run(M)

if S.cur is not None: S.force(S.cur.tag)
E("s_cmp_eq_u32 %s, 7" % s(sCS)); E("s_cbranch_scc1 L_idle")
GS = ("n", "w", "cread", "stdata", "vm", "lg", "smem", "smem_regs")
savedG = {k: copy.deepcopy(getattr(G, k)) for k in GS}
savedS = dict(t=S.t, mf=S.mf, ta=S.ta, ev=dict(S.ev), comp=dict(S.comp), last=S.last, fl=list(S.fl), Q=[[(g, g.pos) for g in q] for q in S.Q], checks=list(S.checks), F=list(S.F))

def wo_reads(hh):
    un = WOU[hh // 4]
    return [("ds_read_b64_tr_b16 %s, %s offset:%d" % (a(wof(hh) + 4 * ct + 2 * rd, 2), v(vWBr + 4 * (un // 4) + ct), U(un % 4) + 4096 * (hh % 4) + 1024 * rd), "wor") for ct in range(4) for rd in range(2)]
NRES = (256 - 8 * NLAND) // 16
S.F += qe + o_chain()
S.F += [NeedEv("bw2")] + sum((wo_reads(hh) for hh in range(8)), []) + [NeedEv("bw3")] + sum((wo_reads(hh) for hh in range(8, NRES)), []) + [Mark("wor1")]
o_queue()
rest = [act_vg(n, ["cA_"] + (["km%d" % (n - NLAND)] if n - NLAND >= 3 else [])) for n in range(3 + NPRE, 28)]
ins = {2: [wo_vg(0, ["bq"])], 4: [] if TWO and opt("wo1e", 1) else [wo_vg(1, ["bq"])], 6: [w2_vg(6, ["bq"])], 9: [wo_vg(2, ["bw2"])], 11: [wo_vg(3, ["bw2"])]}
for k, g in enumerate(rest):
    Q2 += ins.get(k, []) + [g]
for gr in range(4):
    it = []
    for k in range(4):
        hh = 4 * gr + k
        it += ["s_mov_b32 %s, %d" % (s(sSO), (56 + hh) * 8192), ld(ol(hh), vA, s(sSO), 0)]
    (Q1 if opt("oprio", 1) else Q2).append(VG(it, "ol%d" % gr, at=("ost", HOP_O), **FAB))
units = []
for n in range(28):
    un = W2U[n // 4]
    for cp in range(2):
        k = len(units); pre = []
        if cp == 0 and n == 12: pre = [Need("wb3"), Need("wb4"), Need("wb5"), Need("wo0"), Need("wo1"), W(lg="w"), BAR] + MK("bw2")
        if cp == 0 and n == 24: pre = [Need("wb6"), Need("wo2"), Need("wo3"), BAR] + MK("bw3")
        reads = [("ds_read_b64_tr_b16 %s, %s offset:%d" % (v(BUF(k) + 4 * t + 2 * rd, 2), v(vWBr + 4 * (un // 4) + 2 * cp + t), U(un % 4) + 4096 * (n % 4) + 1024 * rd), "w")
                 for t in range(2) for rd in range(2)]
        B = lambda rt: v(accH(n, 0, rt), 4) if n < 3 else a(land(n) + 4 * rt, 4)
        mf = ["%s %s, %s, %s, %s" % (MF, v(accB(rt, 2 * cp + t), 4), v(BUF(k) + 4 * t, 4), B(rt), v(accB(rt, 2 * cp + t), 4) if n else "0")
              for t in range(2) for rt in range(2)]
        post = []
        if cp == 1: post = MK("km%d" % n) + ([Need("al%d" % (n + 1))] if 2 <= n < 27 else [])
        units.append(Unit(pre, reads, mf, post))
M = pipeline(units, 2) + MK("pb")
wl = sum((wo_reads(hh) for hh in range(NRES, 16)), [])
M += wl[:8]
for ct in range(4):
    r = accB(1, ct)
    M += ["v_perm_b32 %s, %s, %s, %s" % (v(r), v(vTH), v(r), s(sP0)), "v_perm_b32 %s, %s, %s, %s" % (v(r + 1), v(vTH), v(r + 1), s(sP1)), Mark("pd%d" % ct)]
    Q0.append(st_vg(r, vPs, "0", 1024 * ct, "pst", ["pd%d" % ct]))
    M += wl[8 + 8 * ct:16 + 8 * ct]
M += wl[40:] + [Issued("pst")] + MK("pst") + [NeedEv("wor1")]
Q1.append(VG([ld(prl(ct), vPl, "0", 1024 * ct) for ct in range(4)], "pl", at=("pst", HOP_P), **FAB))
for gr in range(4):
    regs = [ol(4 * gr + k) for k in range(4)]
    rl = []
    for k in range(4): rl += ["s_mov_b32 %s, %d" % (s(sPM), (56 + 4 * gr + k) * 8192), ld(regs[k], vA, s(sPM), 0)]
    M += [Need("ol%d" % gr), tag_check("cO%d" % gr, regs, rl)]
    for k in range(4):
        hh = 4 * gr + k
        for ct in range(4): M.append("%s %s, %s, %s, %s" % (MF, v(accO(ct), 4), a(wof(hh) + 4 * ct, 4), v(ol(hh), 4), v(accO(ct), 4) if hh else "0"))
M += MK("po")
body = []
for ct in range(4): body += ["v_xor_b32 %s, %s, %s" % (v(prl(ct) + k), s(sTB + k), v(prl(ct) + k)) for k in range(2)]
t = v(vT)
body += ["v_or3_b32 %s, %s, %s, %s" % (t, v(prl(0)), v(prl(0) + 1), v(prl(1))), "v_or3_b32 %s, %s, %s, %s" % (t, t, v(prl(1) + 1), v(prl(2))),
         "v_or3_b32 %s, %s, %s, %s" % (t, t, v(prl(2) + 1), v(prl(3))), "v_or_b32 %s, %s, %s" % (t, t, v(prl(3) + 1)),
         "v_and_b32 %s, 0xff, %s" % (t, t), "v_cmp_ne_u32 vcc, 0, %s" % t, "s_cmp_lg_u64 vcc, 0"]
M += [Need("pl"), checked("cP", body, [ld(prl(ct), vPl, "0", 1024 * ct) for ct in range(4)])]
for ct in range(4):
    r = accB(0, ct)
    for k in range(2): M.append("v_pk_add_f32 %s, %s, %s" % (v(r + 2 * k, 2), v(r + 2 * k, 2), v(prl(ct) + 2 * k, 2)))
for ct in range(4):
    r = accB(0, ct)
    for k in range(2): M.append("v_pk_fma_f32 %s, %s, %s, %s op_sel_hi:[1,0,1]" % (v(r + 2 * k, 2), v(r + 2 * k, 2), v(vOG, 2), v(accO(ct) + 2 * k, 2)))
    M.append("v_cvt_pk_bf16_f32 %s, %s, %s" % (v(r), v(r), v(r + 1))); M.append("v_cvt_pk_bf16_f32 %s, %s, %s" % (v(r + 1), v(r + 2), v(r + 3)))
    M.append("buffer_store_dwordx2 %s, %s, %s, 0 offen offset:%d" % (v(r, 2), v(vO), s(SOUT, 4), 32 * ct))
S.run(M); S.drain(); S.mark("end")
print("sim:", " ".join("%s=%d" % (n, t) for t, n in S.log if not n.startswith(("ad", "xr", "od", "pd")) and not n.endswith("_")), file=sys.stderr)
if "--vlog" in sys.argv: print(" ".join("%s@%d>%d" % (tg, t, c) for t, tg, c in S.vlog), file=sys.stderr)
E("s_cmp_lg_u32 s2, 0"); E("s_cbranch_scc1 L_fin")
E("v_mov_b32 %s, 0" % v(vT))
E("buffer_store_dwordx2 %s, %s, %s, 0 offen sc1" % (v(vN, 2), v(vT), s(SWS, 4)))
G.label("L_fin")
def dump_stamps():
    if not STAMPS: return
    G.raw("  s_memrealtime s[100:101]\n  s_waitcnt vmcnt(0) lgkmcnt(0)\n  s_memrealtime s[4:5]\n  s_waitcnt lgkmcnt(0)")
    G.raw("  s_lshl2_add_u32 s3, s2, %s\n  s_mul_i32 s3, s3, 80\n  s_add_u32 s3, s3, 0x%x\n  v_mov_b32 v2, s3" % (s(sW), STB))
    for k, r in enumerate([KA + 2 * k for k in range(8)] + [100, 4]):
        G.raw("  v_mov_b32 v4, s%d\n  v_mov_b32 v5, s%d\n  buffer_store_dwordx2 v[4:5], v2, %s, 0 offen offset:%d\n  s_nop 1" % (r, r + 1, s(SWS, 4), 8 * k))
dump_stamps()
G.label("L_end")
G.raw("  s_endpgm")
G.label("L_idle")
for k in GS: setattr(G, k, savedG[k])
SEL = []
S.t, S.mf, S.ta, S.ev, S.comp, S.last, S.fl = (savedS[k] for k in ("t", "mf", "ta", "ev", "comp", "last", "fl"))
S.cur = None
keep = lambda g: not (g.tag.startswith("al") or g.tag.startswith("wb") or g.tag.startswith("pA"))
for qi in range(3):
    S.Q[qi][:] = [g for g, p in savedS["Q"][qi] if keep(g)]
    for g, p in savedS["Q"][qi]: g.pos = p
S.checks = []
S.F = savedS["F"] + qe + o_chain()
o_queue()
S.drain()
G.raw("  s_endpgm")
emit_spins()
G.label("L_codeend")

hdr = open("cdna_kernels/%s.s.ref" % NAME).read().split("; Override launch geometry")[0]
txt = hdr + """; @launch grid=(256,1,1) block=(256,1,1) lds=163840
.amdgcn_target "amdgcn-amd-amdhsa--gfx950"
.text
.globl {N}_kernel
.p2align 8
.type {N}_kernel,@function
{N}_kernel:
{B}.section .rodata,"a"
.p2align 6
.amdhsa_kernel {N}_kernel
  .amdhsa_next_free_vgpr 512
  .amdhsa_next_free_sgpr 102
  .amdhsa_accum_offset 256
  .amdhsa_group_segment_fixed_size 0
  .amdhsa_kernarg_size 88
  .amdhsa_user_sgpr_count 2
  .amdhsa_user_sgpr_kernarg_segment_ptr 1
  .amdhsa_system_sgpr_workgroup_id_x 1
.end_amdhsa_kernel
""".format(N=NAME, B=G.text())
if "--cyc" in sys.argv: txt = txt.replace("s_memrealtime", "s_memtime")
open(OUTF, "w").write(txt)
print("stats", G.stats, "nops", G.nops, "maxvm", G.maxvm, "stamps", stn, file=sys.stderr)
open(OUTF + ".names", "w").write(" ".join(stn + ["-"] * (8 - len(stn)) + ["end", "drain"]))
```

```python
import sys, copy, struct
sys.path.insert(0, "work")
from asmgen import *
from sched3 import *
NAME = "gated_mix__linear_attn_block__dense_activation_mish__prompt"
SEL = [x[5:].split(",") for x in sys.argv if x.startswith("--st=")]
SEL = SEL[0] if SEL else []
STAMPS = bool(SEL)
OPT = dict(x[2:].split("=") for x in sys.argv if x.startswith("--") and "=" in x and not x.startswith("--st="))
def opt(k, d): return type(d)(OPT.get(k, d))
OUTF = [x for x in sys.argv[1:] if not x.startswith("--")][0]
def fbits(x): return "0x%08x" % struct.unpack("<I", struct.pack("<f", x))[0]
LOG2E = 1.4426950408889634
LAT_COLD, LAT_L2, LAT_FAB, LAT_ST = opt("cold", 1300), opt("l2", 700), opt("fab", 1400), opt("lst", 1300)
SVC_COLD, SVC_FAB = opt("svcc", 90), opt("svcf", 75)
HOP_PW, HOP_A, HOP_KV, HOP_O, HOP_P = opt("hpw", 1200), opt("ha", 900), opt("hkv", 1200), opt("ho", 1200), opt("hp", 900)
NLAND = opt("nland", 10)

FL, KVB, PWB, ACTB, STB, PRB = 0x1000, 0x40000, 0x140000, 0x300000, 0xD00000, 0xE00000
OOB = 0x40000000
U = lambda n: 16384 * n
STG = U(9); BIASL = U(9) + 8192; KVF = U(9) + 12288
W2U = [4, 5, 3, 6, 7, 8, 0]; WOU = [1, 2, 4, 5]
SX, SWQ, SW1, SW2, SWO, SWS, SOUT, SB1 = 8, 12, 16, 20, 24, 28, 32, 36
sN = 40; sTB = 42
sI, sH, sW, sJ4, sJ, sLA, sLB, sKH, sCS, sCNT = 44, 45, 46, 47, 48, 49, 50, 51, 52, 53
sT = 54
sMC = 60; sPC = 62; sE6 = 64; sQ = 65; sM8 = 66; sFF = 68; sTH = 69; sKA = 70
sKO = 74; sWL = 75; sAK = 76; sSO = 78; sWK = 79; sSO3 = 80; sWOw = 81; sPM = 82; sP0 = 3; sP1 = 4
KA = 84
vL = 1
vX = 2; vW1 = 6; vXr = 10; vW1r = 12; vR = 16; vRr = 17; vP = 19; vB = 20; vBr = 21
vPT = 2
vTabW = 22; vL16 = 23
vPW = 26; vA = 27; vFW = 29; vPP = 30; vPA = 31; vWB = 32; vWO = 36; vO = 38; vPs = 39; vWBr = 40
vN = 52; vT = 54; vKVs = 55; vKVg = 56; vSw = 57; vSr = 58; vKFw = 59; vPl = 60; vG = 62
L3, L7, LG, L5, LQ, L03, LGP, LN = range(192, 200)
t0_, t1_, t2_, t3_, t4_ = range(200, 205)
accH = lambda b, t, rt: 64 + ((b * 2 + t) * 2 + rt) * 4
bias = lambda b, t: 128 + (b * 2 + t) * 4
accK = lambda dt, rt: 160 + (dt * 2 + rt) * 4
accV = lambda dt, rt: 176 + (dt * 2 + rt) * 4
accQ = lambda dt, rt: 192 + (dt * 2 + rt) * 4
vC6 = 208; vOG = 210; vTabA = 212; vTH = 213; vSEL = 216; vPoll = 222
BUF = lambda n: 224 + 8 * (n % 4)
xf = lambda ks, rt: (ks * 2 + rt) * 4
accB = lambda rt, ct: accH(ct, 1, rt)
accO = lambda ct: [96, 100, 112, 116][ct]
prl = lambda ct: [64, 68, 80, 84][ct]
land = lambda n: 256 - 8 * NLAND + 8 * ((n - 3) % NLAND)
wof = lambda hh: 16 * hh
ol = lambda hh: 144 + 4 * hh

G = Gen(); E = G.E
nst = [0]; stn = ["start"]
def stamp(name):
    if name in SEL:
        k = nst[0]; nst[0] += 1
        assert k < 8
        stn.append(name)
        E("s_memrealtime %s" % s(KA + 2 * k, 2))
def MK(name): return [Mark(name), Call(lambda: stamp(name))]
def W(vm=None, lg=None): return Call(lambda: G.wait(vm=vm, lg=lg), 4)
def DELAY(n): return [Call(lambda: None, 16) for _ in range(n)]
BAR = "s_barrier"
MF = "v_mfma_f32_16x16x32_bf16"
spins = []
def checked(name, body, reload):
    k = len(spins)
    def pre(): G.label("L_chk%d" % k)
    def post(): G.label("L_ok%d" % k); stamp(name)
    spins.append(reload)
    return Atom([Call(pre)] + body + ["s_cbranch_scc1 L_spin%d" % k, Call(post), Mark(name)])
def emit_spins():
    for k, reload in enumerate(spins):
        G.label("L_spin%d" % k)
        G.raw("  s_cmp_eq_u32 %s, 0" % s(sCNT))
        G.raw("  s_cbranch_scc1 L_ok%d" % k)
        G.raw("  s_sub_u32 %s, %s, 1" % (s(sCNT), s(sCNT)))
        for r in reload: G.raw("  " + r)
        G.raw("  s_waitcnt vmcnt(0)")
        G.raw("  s_branch L_chk%d" % k)
def poll_vg(ptag, vaddr, at):
    return VG(["buffer_load_dwordx2 %s, %s, %s, 0 offen sc1" % (v(vPoll, 2), v(vaddr), s(SWS, 4))], ptag, lat=LAT_FAB, at=at)
def poll_check(ptag, vaddr, mask, name):
    body = ["v_cmp_ne_u64 vcc, %s, %s" % (v(vPoll, 2), v(vN, 2))]
    if mask is None: body.append("s_cmp_lg_u64 vcc, 0")
    else: body += ["s_and_b32 vcc_lo, vcc_lo, 0x%x" % (mask & 0xffffffff), "s_and_b32 vcc_hi, vcc_hi, 0x%x" % (mask >> 32), "s_cmp_lg_u64 vcc, 0"]
    def f():
        G.wait(vm=ptag)
        S.emit_plain(checked(name, body, ["buffer_load_dwordx2 %s, %s, %s, 0 offen sc1" % (v(vPoll, 2), v(vaddr), s(SWS, 4))]))
    return Check(ptag, f, name + "_")
def flag_vg(typ, tags, name, after=()):
    it = [W(vm=list(tags))]; so = "0"
    if typ: it.append("s_mov_b32 %s, %d" % (s(sSO3), typ * 32768)); so = s(sSO3)
    it.append(Call(lambda: stamp(name)))
    it.append("buffer_store_dwordx2 %s, %s, %s, %s offen sc1" % (v(vN, 2), v(vFW), s(SWS, 4), so))
    return VG(it, name, after=after, lat=LAT_ST, done_tag=tags, mark=name)
def tag_check(name, regs, reload):
    t = v(vT)
    body = ["v_xor_b32 %s, %s, %s" % (v(r + 3), s(sTH), v(r + 3)) for r in regs]
    body += ["v_or3_b32 %s, %s, %s, %s" % (t, v(regs[0] + 3), v(regs[1] + 3), v(regs[2] + 3)), "v_or_b32 %s, %s, %s" % (t, t, v(regs[3] + 3)),
             "v_cmp_lt_u32 vcc, %s, %s" % (s(sFF), t), "s_cmp_lg_u64 vcc, 0"]
    return checked(name, body, reload)

class Unit:
    def __init__(self, pre, reads, mf, post=()): self.pre, self.reads, self.mf, self.post = pre, reads, mf, list(post)
def pipeline(units, L):
    seq = []; N = len(units)
    for n in range(-L, N):
        rd = units[n + L] if n + L < N else None
        mm = units[n] if n >= 0 else None
        if rd: seq += rd.pre
        R = rd.reads if rd else []
        M = mm.mf if mm else []
        for k in range(max(len(R), len(M))):
            if k < len(M): seq.append(M[k])
            if k < len(R): seq.append(R[k])
        if mm: seq += mm.post
    return seq

E("s_cmp_ge_u32 s2, 256"); E("s_cbranch_scc1 L_end")
E("s_load_dwordx16 %s, s[0:1], 0" % s(KA, 16))
E("s_load_dwordx2 %s, s[0:1], 80" % s(SWS, 2))
E("s_load_dwordx2 %s, s[0:1], 64" % s(SOUT, 2))
if STAMPS: E("s_memrealtime s[100:101]")
G.raw("  s_getpc_b64 s[4:5]\nL_pc:")
E("s_bfe_u32 s3, s2, 0x30003"); E("s_lshl_b32 s3, s3, 6")
E("v_lshrrev_b32 %s, 6, v0" % v(vT)); E("v_and_or_b32 v3, v0, 15, s3"); E("v_lshl_add_u32 v2, %s, 4, v3" % v(vT))
E("v_lshlrev_b32 v2, 6, v2"); G.raw("  v_min_u32 v2, L_codeend-L_pc-4, v2")
G.raw("  v_add_co_u32 v2, vcc, s4, v2\n  v_mov_b32 v3, s5\n  v_and_b32 v1, 63, v0\n  v_addc_co_u32 v3, vcc, 0, v3, vcc\n  global_load_dword %s, v[2:3], off" % v(vPoll))
G.vm.append(["cpf", {("v", vPoll)}, False])
E("v_readfirstlane_b32 %s, %s" % (s(sW), v(vT)))
E("s_bfe_u32 %s, s2, 0x20001" % s(sT)); E("s_bfe_u32 %s, s2, 0x20003" % s(sT + 1))
E("s_lshl2_add_u32 %s, %s, %s" % (s(sI), s(sT), s(sT + 1)))
E("s_and_b32 %s, s2, 1" % s(sKH)); E("s_lshr_b32 %s, s2, 5" % s(sCS))
E("s_lshl3_add_u32 %s, %s, %s" % (s(sH), s(sKH), s(sCS)))
for srd, n in ((SWQ, 1204224), (SX, 1835008)):
    E("s_mov_b32 %s, %d" % (s(srd + 2), n)); E("s_mov_b32 %s, 0x20000" % s(srd + 3))
E("s_lshl_b32 %s, %s, 12" % (s(sQ), s(sW)))
E("v_lshrrev_b32 %s, 3, v1" % v(L3)); E("v_and_b32 %s, 7, v1" % v(L7)); E("v_lshrrev_b32 %s, 4, v1" % v(LG)); E("v_lshrrev_b32 %s, 5, v1" % v(L5))
E("v_bfe_u32 %s, v1, 2, 2" % v(LQ)); E("v_and_b32 %s, 3, v1" % v(L03)); E("v_and_b32 %s, 1, %s" % (v(LGP), v(LG))); E("v_and_b32 %s, 15, v1" % v(LN))
T0, T1, T2, T3, T4 = (v(x) for x in (t0_, t1_, t2_, t3_, t4_))
E("v_lshl_add_u32 %s, %s, 2, %s" % (T0, v(L5), v(LQ))); E("v_lshl_add_u32 %s, %s, 3, %s" % (T0, v(LGP), T0))
E("v_mul_u32_u24 %s, 2688, %s" % (T0, T0))
E("v_lshlrev_b32 %s, 1, %s" % (T1, v(LGP))); E("v_xor_b32 %s, %s, %s" % (T1, T1, v(L03))); E("v_lshl_add_u32 %s, %s, 4, %s" % (T0, T1, T0))
E("s_add_u32 %s, %s, 1" % (s(sT), s(sW))); E("s_mul_i32 %s, %s, 896" % (s(sT), s(sT)))
E("s_cmp_eq_u32 %s, 2" % s(sW)); E("s_cselect_b32 %s, 0, %s" % (s(sT), s(sT)))
E("s_cmp_eq_u32 %s, 3" % s(sW)); E("s_cselect_b32 %s, 0x%x, %s" % (s(sT), OOB, s(sT)))
E("s_mul_i32 %s, %s, %d" % (s(sT + 1), s(sI), 32 * 2688)); E("s_add_u32 %s, %s, %s" % (s(sT), s(sT), s(sT + 1)))
E("s_mul_i32 %s, %s, 56" % (s(sT + 1), s(sH))); E("s_add_u32 %s, %s, %s" % (s(sT), s(sT), s(sT + 1)))
E("v_add_u32 %s, %s, %s" % (v(vR), s(sT), T0))
E("s_lshl2_add_u32 %s, %s, %s" % (s(sT), s(sI), s(sW))); E("s_lshl1_add_u32 %s, %s, %s" % (s(sT), s(sT), s(sKH))); E("s_mul_i32 %s, %s, %d" % (s(sT), s(sT), 16 * 896))
E("s_mul_i32 %s, %s, %d" % (s(sT + 1), s(sKH), -28672)); E("s_add_u32 %s, %s, 12288" % (s(sT + 1), s(sT + 1)))
E("v_mul_u32_u24 %s, 896, %s" % (T0, v(L3))); E("v_xor_b32 %s, %s, %s" % (T1, v(L7), v(LG))); E("v_add_u32 %s, %s, %s" % (T0, s(sT), T0))
E("v_lshl_add_u32 %s, %s, 4, %s" % (v(vX), T1, T0)); E("v_xor_b32 %s, 4, %s" % (T1, T1)); E("v_lshl_add_u32 %s, %s, 4, %s" % (T1, T1, T0))
E("v_add_u32 %s, 6144, %s" % (v(vX + 1), T1)); E("v_add_u32 %s, %s, %s" % (v(vX + 2), s(sT + 1), v(vX))); E("v_add_u32 %s, %s, %s" % (v(vX + 3), s(sT + 1), v(vX + 1)))
E("s_lshr_b32 %s, %s, 1" % (s(sT + 1), s(sQ))); E("s_add_u32 m0, %s, %d" % (s(sT + 1), STG))
E("s_mov_b32 %s, %d" % (s(sSO), 16 * 2688 - 1024))
G.wait(lg="all")
E("s_mov_b64 %s, %s" % (s(SWQ, 2), s(KA + 2, 2))); E("s_mov_b64 %s, %s" % (s(SX, 2), s(KA, 2)))
S = Sched(G, t0=opt("t0", 950), cap=opt("cap", 16))
S.slow, S.slow_until = 1.5, 2600
COLD = dict(lat=LAT_COLD, svc=SVC_COLD); FAB = dict(lat=LAT_FAB, svc=SVC_FAB)
def x_vg(st):
    it = [W(lg="x%d" % (st - 3))] if st >= 3 else []
    it.append("s_add_u32 m0, %s, %d" % (s(sQ), U(st % 3)))
    so = "0"
    if st: it.append("s_movk_i32 %s, %d" % (s(sSO), 128 * st)); so = s(sSO)
    else: it.append("s_nop 0")
    for u in range(4): it.append("buffer_load_dwordx4 %s, %s, %s offen offset:%d lds" % (v(vX + u), s(SX, 4), so, 1024 * u))
    return VG(it, "x%d" % st, after=["xr%d" % (st - 3)] if st >= 3 else [], **COLD)
TWO = opt("two", 0); BE = opt("be", 0)
vW1s = 160
ALOC = [U(3), U(4), U(5), U(3) + 2048, U(4) + 2048, U(5) + 2048, U(3)]
BLOC = [U(4), U(5), U(3) + 2048, U(1), U(1) + 2048, U(2), U(2) + 2048]
if TWO: W2U = [1, 5, 3, 6, 7, 8, 0]; WOU = [4, 2, 1, 5]
QA, QB = (0, 4) if TWO else (1, 2)
def w_vg(st):
    it = []; so = "0"
    for line in range(1 if TWO else 2):
        it.append("s_add_u32 m0, %s, %d" % (s(sQ), ALOC[st] if TWO else U(3 + st % 3) + 2048 * line))
        if st and line == 0: it.append("s_mov_b32 %s, %d" % (s(sSO), 64 * 3584 * st)); so = s(sSO)
        elif TWO: it.append("s_nop 0")
        for rd in range(2): it.append("buffer_load_dwordx4 %s, %s, %s offen offset:%d lds" % (v(vW1 + 2 * line + rd), s(SW1, 4), so, 1024 * rd))
    if TWO: return VG(it, "w%d" % st, after=["wad"] + (["xr%d" % (st - 3)] if st >= 3 else []) + (["b1"] if st == 6 else []), **COLD)
    return VG(it, "w%d" % st, after=["wad"] + (["b%d" % (st - 2)] if st >= 3 else []), **COLD)
def wB_vg(st):
    it = [W(lg="x4")] if st == 3 else [W(lg="x5")] if st == 5 else []
    so = "0"
    it.append("s_add_u32 m0, %s, %d" % (s(sQ), BLOC[st]))
    if st: it.append("s_mov_b32 %s, %d" % (s(sSO), 64 * 3584 * st)); so = s(sSO)
    else: it.append("s_nop 0")
    for rd in range(2): it.append("buffer_load_dwordx4 %s, %s, %s offen offset:%d lds" % (v(vW1 + 2 + rd), s(SW1, 4), so, 1024 * rd))
    return VG(it, "wB%d" % st, after=["wad", "xr3"] + {0: ["b2"], 1: ["b3"], 2: ["b4"], 3: ["xr4"], 4: ["xr4"], 5: ["xr5"], 6: ["xr5"]}.get(st, []), **COLD)
def w2_vg(u, after):
    it = ["s_add_u32 %s, %s, %d" % (s(sWL), s(sW), 4 * u), "v_readlane_b32 %s, %s, %s" % (s(sWK), v(vTabW), s(sWL)), "s_add_u32 m0, %s, %d" % (s(sQ), U(W2U[u]))]
    for k in range(4): it.append("buffer_load_dwordx4 %s, %s, %s offen offset:%d lds" % (v(vWB + k), s(SW2, 4), s(sWK), 1024 * k))
    return VG(it, "wb%d" % u, after=["late"] + list(after), **COLD)
def wo_vg(u, after):
    it = ["s_add_u32 m0, %s, %d" % (s(sQ), U(WOU[u])), "s_add_u32 %s, %s, %d" % (s(sSO), s(sWOw), u * 4 * 28 * 896)]
    for k, r in enumerate((vWB, vWO, vWB + 2, vWO + 1)): it.append("buffer_load_dwordx4 %s, %s, %s offen offset:%d lds" % (v(r), s(SWO, 4), s(sSO), 1024 * k))
    return VG(it, "wo%d" % u, after=after, **COLD)
def kv_lds(ks): return U(6) + 4096 * ks if ks < 12 else STG + 4096 * (ks - 12)
def q_lds(f): return U(QA) + 1024 * f if f < 16 else U(QB) + 4096 * ((f - 16) // 3) + 1024 * ((f - 16) % 3)
def pw_vg(setup, cnt, after, lg=None, tag="pwl"):
    it = ([W(lg=lg)] if lg else []) + setup
    for k in range(cnt): it.append("buffer_load_dwordx4 %s, %s, %s offen offset:%d sc1 lds" % (v(vPW), s(SWS, 4), s(sSO), 1024 * k))
    return VG(it, tag, after=["cPW_"] + ([opt("pwa", "b5")] if TWO else []) + after, **FAB)
SKG = opt("skg", 0); N0 = 28 - SKG
def act1_vg(n, rt, after):
    it = ["buffer_load_dwordx4 %s, %s, %s, %s offen sc1" % (a(land(n) + 4 * rt, 4), v(vA + rt), s(SWS, 4), s(sAK + (n & 1)))]
    nx = n + 2
    if nx > 27 and rt == 1: nx -= SKG
    if nx <= 27: it.append("v_readlane_b32 %s, %s, %d" % (s(sAK + (n & 1)), v(vTabA), nx))
    return VG(it, ("al%d" if rt else "am%d") % n, after=after, **FAB)
def act_vg(n, after):
    if n >= N0: return act1_vg(n, 1, after)
    it = ["buffer_load_dwordx4 %s, %s, %s, %s offen sc1" % (a(land(n) + 4 * rt, 4), v(vA + rt), s(SWS, 4), s(sAK + (n & 1))) for rt in range(2)]
    if n < 26: it.append("v_readlane_b32 %s, %s, %d" % (s(sAK + (n & 1)), v(vTabA), n + 2))
    return VG(it, "al%d" % n, after=after, **FAB)
def ld(reg, vaddr, so, off): return "buffer_load_dwordx4 %s, %s, %s, %s offen offset:%d sc1" % (v(reg, 4), v(vaddr), s(SWS, 4), so, off)
def st_vg(reg, vaddr, so, off, tag, after): return VG(["buffer_store_dwordx4 %s, %s, %s, %s offen offset:%d sc1" % (v(reg, 4), v(vaddr), s(SWS, 4), so, off)], tag, after=after, lat=LAT_ST)

Q0, Q1, Q2 = S.Q
Q2.append(VG(["buffer_load_dwordx4 %s, %s, 0 offen lds" % (v(vR), s(SWQ, 4)), "buffer_load_dwordx4 %s, %s, %s offen offset:1024 lds" % (v(vR), s(SWQ, 4), s(sSO))], "rp", **COLD))
Q2 += [x_vg(0), w_vg(0)]
Q2.append(VG(["s_lshr_b32 %s, %s, 2" % (s(sSO), s(sQ)), "s_add_u32 m0, %s, %d" % (s(sSO), BIASL), "s_nop 0",
              "buffer_load_dwordx4 %s, %s, 0 offen lds" % (v(vB), s(SB1, 4))], "bias", after=["wad"], **COLD))
x1 = x_vg(1); x1.after = ("wad",)
x2 = x_vg(2); x2.after = ("pwdata",) if opt("x2late", 1) else ("wad",)
w2_ = w_vg(2); w2_.after = x2.after
Q2 += [x1, w_vg(1), x2, w2_]
for st in range(3, 7):
    Q2 += [x_vg(st), w_vg(st)]
    if TWO and 0 <= st - (6 - BE) < BE: Q2.append(wB_vg(st - (6 - BE)))
KVP = opt("kvp", 7)
if TWO: Q2 += [wB_vg(st) for st in range(BE, KVP)]
def su(lds, mem): return ["s_add_u32 m0, %s, %d" % (s(sQ), lds), "s_add_u32 %s, %s, %d" % (s(sSO), s(sQ), mem)]
Q2 += [pw_vg(su(U(6), 0), 4, []), pw_vg(su(U(7), 16384), 4, []), pw_vg(su(U(8), 32768), 4, []),
       pw_vg(["s_lshr_b32 %s, %s, 1" % (s(sSO), s(sQ)), "s_add_u32 m0, %s, %d" % (s(sSO), STG), "s_add_u32 %s, %s, 49152" % (s(sSO), s(sSO))], 2, ["b0"])]
if TWO: Q2 += [wB_vg(st) for st in range(KVP, 7)]
PQ = "pwq" if opt("pq", 0) else "pwl"
PQA = [opt("pqa", "wad")]; W2A = [opt("w2a", "wad")]
Q2 += [
       pw_vg(su(U(QA), 57344), 4, ["xr6" if TWO else "xr4"] + PQA, "x6" if TWO else "x4", PQ),
       pw_vg(["s_add_u32 m0, %s, %d" % (s(sQ), U(QB)), "s_mul_i32 %s, %s, 3072" % (s(sSO), s(sW)), "s_add_u32 %s, %s, %d" % (s(sSO), s(sSO), 57344 + 16384)], 3, ["c1" if TWO else "xr5"] + PQA, None if TWO else "x5", PQ)]
Q2 += ([w2_vg(2, ["c1"] + W2A), w2_vg(1, ["c1"] + W2A), w2_vg(0, ["b7"])] + ([wo_vg(1, ["b7", "late"])] if opt("wo1e", 1) else []) if TWO else [w2_vg(0, ["b5"] + W2A), w2_vg(1, ["b6"] + W2A), w2_vg(2, ["b7"])]) + [w2_vg(3, ["bk1"]), w2_vg(4, ["bk1"]), w2_vg(5, ["bk1"])]

M = []
m = M.append
m("s_mov_b64 %s, %s" % (s(SW1, 2), s(KA + 8, 2))); m("s_mov_b64 %s, %s" % (s(SB1, 2), s(KA + 10, 2)))
m("s_lshr_b32 %s, %s, 2" % (s(sJ4), s(sH))); m("s_and_b32 %s, %s, 3" % (s(sJ), s(sH)))
m("s_lshl_b32 %s, %s, 2" % (s(sT), s(sJ)))
m("s_lshr_b32 %s, 0x5420, %s" % (s(sLA), s(sT))); m("s_and_b32 %s, %s, 15" % (s(sLA), s(sLA)))
m("s_lshr_b32 %s, 0x6331, %s" % (s(sLB), s(sT))); m("s_and_b32 %s, %s, 15" % (s(sLB), s(sLB)))
for srd, n in ((SW1, 1605632), (SB1, 3584)):
    m("s_mov_b32 %s, %d" % (s(srd + 2), n)); m("s_mov_b32 %s, 0x20000" % s(srd + 3))
m("v_and_b32 %s, 3, %s" % (T0, v(L3))); m("v_lshl_add_u32 %s, %s, 3, %s" % (T0, v(L5), T0)); m("v_mul_u32_u24 %s, 3584, %s" % (T0, T0))
m("v_lshlrev_b32 %s, 1, %s" % (T1, v(LG))); m("v_xor_b32 %s, %s, %s" % (T2, T1, v(L7)))
m("s_mul_i32 %s, %s, 896" % (s(sT + 1), s(sJ4)))
m("s_lshl_b32 %s, %s, 7" % (s(sT + 2), s(sLA))); m("s_add_u32 %s, %s, %s" % (s(sT + 2), s(sT + 2), s(sT + 1)))
m("s_lshl_b32 %s, %s, 7" % (s(sT + 3), s(sLB))); m("s_add_u32 %s, %s, %s" % (s(sT + 3), s(sT + 3), s(sT + 1)))
m("s_mul_i32 %s, %s, %d" % (s(sT), s(sW), 16 * 3584)); m("v_add_u32 %s, %s, %s" % (T0, s(sT), T0))
m("s_cmp_eq_u32 %s, 2" % s(sJ)); m("s_cselect_b32 %s, 4, 0" % s(sT + 4))
m("v_lshl_add_u32 %s, %s, 4, %s" % (T1, T2, T0)); m("v_add_u32 %s, %s, %s" % (v(vW1), s(sT + 2), T1))
m("v_xor_b32 %s, %s, %s" % (T1, s(sT + 4), T2)); m("v_lshl_add_u32 %s, %s, 4, %s" % (T1, T1, T0)); m("v_add_u32 %s, %s, %s" % (v(vW1 + 2), s(sT + 3), T1))
m("v_add_u32 %s, %d, %s" % (v(vW1 + 1), 4 * 3584 - 1024, v(vW1))); m("v_add_u32 %s, %d, %s" % (v(vW1 + 3), 4 * 3584 - 1024, v(vW1 + 2)))
m("s_sub_u32 %s, %s, 128" % (s(sT + 3), s(sT + 3)))
m("v_xor_b32 %s, %s, %s" % (T0, s(sT + 4), v(LN))); m("v_lshl_add_u32 %s, %s, 4, %s" % (T0, T0, s(sT + 3))); m("v_lshl_add_u32 %s, %s, 4, %s" % (T1, v(LN), s(sT + 2)))
m("v_cmp_gt_u32 vcc, 8, %s" % v(LN)); m("s_mov_b32 %s, 0x10000000" % s(SWS + 2)); m("s_mov_b32 %s, 0x20000" % s(SWS + 3))
m("v_cndmask_b32 %s, %s, %s, vcc" % (v(vB), T0, T1))
M += MK("wad")
m("s_lshl_b32 %s, %s, 6" % (s(sT), s(sI))); m("s_min_u32 %s, %s, 832" % (s(sT), s(sT)))
m("s_add_u32 %s, %s, %s" % (s(KA + 14), s(KA + 14), s(sT))); m("s_addc_u32 %s, %s, 0" % (s(KA + 15), s(KA + 15)))
m("s_mov_b64 %s, %s" % (s(SW2, 2), s(KA + 12, 2))); m("s_mov_b64 %s, %s" % (s(SWO, 2), s(KA + 4, 2)))
m("s_load_dwordx2 %s, %s, 0" % (s(sN, 2), s(SWS, 2)))
m("s_load_dwordx16 %s, %s, 0" % (s(KA, 16), s(KA + 14, 2)))
m("s_mov_b32 %s, 0x88888888" % s(sM8)); m("s_mov_b32 %s, 0x88888888" % s(sM8 + 1))
m("v_lshlrev_b32 %s, 4, v1" % v(vL16))
m("s_lshr_b32 %s, %s, 1" % (s(sT), s(sQ))); m("s_add_u32 %s, %s, %d" % (s(sT), s(sT), STG))
m("v_lshl_add_u32 %s, %s, 10, %s" % (T0, v(L5), s(sT))); m("v_lshl_add_u32 %s, %s, 8, %s" % (T0, v(LGP), T0)); m("v_lshl_add_u32 %s, %s, 6, %s" % (T0, v(LQ), T0)); m("v_lshl_add_u32 %s, %s, 3, %s" % (T0, v(L03), T0))
m("v_lshl_add_u32 %s, %s, 5, %s" % (v(vRr), v(LGP), T0)); m("v_xor_b32 %s, 32, %s" % (v(vRr + 1), v(vRr)))
m("s_mul_i32 %s, %s, 86016" % (s(sT), s(sH))); m("s_add_u32 %s, %s, 0x%x" % (s(sT), s(sT), PWB))
m("v_add_u32 %s, %s, %s" % (v(vPW), s(sT), v(vL16)))
m("s_lshl_b32 %s, %s, 12" % (s(sT + 1), s(sI))); m("s_lshr_b32 %s, %s, 1" % (s(sT + 2), s(sQ))); m("s_add_u32 %s, %s, %s" % (s(sT + 1), s(sT + 1), s(sT + 2)))
m("s_lshl_b32 %s, %s, 11" % (s(sT + 2), s(sI))); m("s_add_u32 %s, %s, 57344" % (s(sT + 2), s(sT + 2)))
m("s_cmp_eq_u32 %s, 2" % s(sW)); m("s_cselect_b32 %s, %s, %s" % (s(sT + 1), s(sT + 2), s(sT + 1)))
m("s_cmp_eq_u32 %s, 3" % s(sW)); m("s_cselect_b32 %s, 0x%x, %s" % (s(sT + 1), OOB, s(sT + 1)))
m("s_cmp_ge_u32 %s, 14" % s(sI)); m("s_cselect_b32 %s, 0x%x, %s" % (s(sT + 1), OOB, s(sT + 1)))
m("v_add_u32 %s, %s, %s" % (v(vP), s(sT + 1), v(vPW)))
m("v_lshrrev_b32 %s, 1, %s" % (T0, v(LN))); m("v_xor_b32 %s, %s, %s" % (T0, T0, v(LG))); m("v_lshl_add_u32 %s, %s, 7, %s" % (T1, v(LN), s(sQ)))
m("v_lshl_add_u32 %s, %s, 4, %s" % (v(vXr), T0, T1)); m("v_xor_b32 %s, 64, %s" % (v(vXr + 1), v(vXr)))
m("v_bfe_u32 %s, v1, 2, 3" % T0); m("v_lshlrev_b32 %s, 7, %s" % (T3, T0)); m("v_lshl_add_u32 %s, %s, 3, %s" % (T3, v(L03), T3))
m("v_and_b32 %s, 3, %s" % (T0, v(L3))); m("v_lshl_add_u32 %s, %s, 5, %s" % (T3, T0, T3))
m("v_lshl_add_u32 %s, %s, 12, %s" % (T0, v(L5), T3)); m("v_add_u32 %s, %d, %s" % (v(vW1r), U(3), T0))
for t in range(1, 4): m("v_xor_b32 %s, %d, %s" % (v(vW1r + t), 32 * t, v(vW1r)))
m("s_lshr_b32 %s, %s, 2" % (s(sT), s(sQ))); m("s_add_u32 %s, %s, %d" % (s(sT), s(sT), BIASL)); m("v_lshl_add_u32 %s, %s, 3, %s" % (v(vBr), v(LG), s(sT)))
for k in range(4): m("v_mov_b32 %s, 0" % v(80 + k))
m(Atom([W(lg="all"), "s_cmp_lg_u32 %s, 2" % s(sW), "s_cbranch_scc1 L_nog"] +
       ["v_writelane_b32 %s, %s, %d" % (v(80 + k), s(KA + 4 * g_ + k), 16 * g_ + 3) for g_ in range(4) for k in range(4)] +
       ["v_mov_b32_dpp %s, %s row_newbcast:3 row_mask:0xf bank_mask:0xf" % (v(80 + k), v(80 + k)) for k in range(4)] + [Call(lambda: G.label("L_nog"))]))
if STAMPS:
    def _f(): E("s_mov_b64 %s, s[100:101]" % s(KA, 2)); nst[0] = 1
    m(Call(_f))
M += MK("pc")
m(Need("rp"))
for t in (1, 0):
    for rd in range(2): m("ds_read_b64_tr_b16 %s, %s offset:%d" % (v(84 + 4 * t + 2 * rd, 2), v(vRr + t), 512 * rd))
for q_ in (3, 2, 1):
    for k in range(4): m("v_mov_b32_dpp %s, %s row_shr:%d row_mask:0xf bank_mask:0x%x" % (v(88 + k), v(88 + k), q_, 1 << q_))
for k in range(4): m("v_cndmask_b32_e64 %s, %s, %s, %s" % (v(88 + k), v(88 + k), v(80 + k), s(sM8, 2)))
M += MK("pwdata")
Q0 += [st_vg(84, vP, "0", 0, "pw", ["pwdata"]), st_vg(88, vP, "0", 1024, "pw", ["pwdata"])]
m(Issued("pw"))
m(Need("bias"))
for b in range(4):
    for t in range(2): m("ds_read_b64 %s, %s offset:%d" % (v(bias(b, t) + 2, 2), v(vBr), 64 * b + 32 * t))
for b in range(4):
    for t in range(2):
        q = bias(b, t)
        m("v_lshlrev_b32 %s, 16, %s" % (v(q), v(q + 2))); m("v_and_b32 %s, 0xffff0000, %s" % (v(q + 1), v(q + 2)))
        m("v_lshlrev_b32 %s, 16, %s" % (v(q + 2), v(q + 3))); m("v_and_b32 %s, 0xffff0000, %s" % (v(q + 3), v(q + 3)))
M = glue(M); m = M.append
D = [NeedEv("pwdata")]; d = D.append
d("s_add_u32 %s, %s, 0x7f4a7c15" % (s(sN), s(sN))); d("s_addc_u32 %s, %s, 0x9e3779b9" % (s(sN + 1), s(sN + 1)))
d("v_mov_b32 %s, %s" % (v(vN), s(sN))); d("v_mov_b32 %s, %s" % (v(vN + 1), s(sN + 1)))
d("s_lshl4_add_u32 %s, %s, %s" % (s(sT), s(sI), s(sH))); d("s_lshl4_add_u32 %s, %s, %s" % (s(sT + 1), s(sT), s(sW)))
d("s_lshl_b32 %s, %s, 3" % (s(sT + 1), s(sT + 1))); d("s_add_u32 %s, %s, %d" % (s(sT + 1), s(sT + 1), FL))
d("v_min_u32 %s, 1, v1" % T0); d("v_lshl_add_u32 %s, %s, 30, %s" % (v(vFW), T0, s(sT + 1)))
d("s_lshl_b32 %s, %s, 7" % (s(sT), s(sH))); d("s_add_u32 %s, %s, %d" % (s(sT), s(sT), FL))
d("v_lshrrev_b32 %s, 2, v1" % T0); d("v_lshl_add_u32 %s, %s, 11, %s" % (T0, T0, s(sT))); d("v_lshl_add_u32 %s, %s, 3, %s" % (v(vPP), v(L03), T0))
d("s_mov_b32 %s, 200000" % s(sCNT))
d(Mark("late1"))
d("s_mov_b32 %s, %s" % (s(sMC), fbits(LOG2E))); d("s_mov_b32 %s, %s" % (s(sMC + 1), fbits(0.5 ** 0.5)))
d("s_mov_b32 %s, %s" % (s(sPC), fbits(LOG2E))); d("s_mov_b32 %s, %s" % (s(sPC + 1), fbits(-1e-6 * LOG2E)))
d("s_mov_b32 %s, %s" % (s(sE6), fbits(1e-6))); d("s_mov_b32 %s, 0xffff" % s(sFF))
d("s_lshl_b32 %s, %s, 16" % (s(sTH), s(sN))); d("v_mov_b32 %s, %s" % (v(vTH), s(sTH)))
d("s_and_b32 %s, %s, 0xff" % (s(sTB), s(sN))); d("s_bfe_u32 %s, %s, 0x80008" % (s(sTB + 1), s(sN)))
d("s_mov_b32 %s, 0x03020106" % s(sP0)); d("s_mov_b32 %s, 0x03020107" % s(sP1))
d("s_cmp_eq_u32 %s, 7" % s(sCS))
d("s_cselect_b32 %s, 0, 1605632" % s(SW2 + 2)); d("s_cselect_b32 %s, 0, 401408" % s(SWO + 2))
d("s_mov_b32 %s, 0x20000" % s(SW2 + 3)); d("s_mov_b32 %s, 0x20000" % s(SWO + 3))
d("s_mov_b32 %s, 1835008" % s(SOUT + 2)); d("s_mov_b32 %s, 0x20000" % s(SOUT + 3))
d("v_add_u32 %s, 65536, %s" % (v(vL16 + 1), v(vL16))); d("v_add_u32 %s, 65536, %s" % (v(vL16 + 2), v(vL16 + 1)))
d("s_mul_i32 %s, %s, %d" % (s(sT), s(sI), 72 * 8192)); d("s_add_u32 %s, %s, 0x%x" % (s(sT), s(sT), ACTB))
d("s_lshl1_add_u32 %s, %s, %s" % (s(sT + 1), s(sW), s(sKH))); d("s_lshl_b32 %s, %s, 10" % (s(sT + 1), s(sT + 1))); d("s_add_u32 %s, %s, %s" % (s(sT + 1), s(sT + 1), s(sT)))
d("v_add_u32 %s, %s, %s" % (v(vA), s(sT + 1), v(vL16))); d("v_xor_b32 %s, 1024, %s" % (v(vA + 1), v(vA)))
d("s_mul_i32 %s, %s, 14" % (s(sT), s(sJ4)))
d("s_lshl1_add_u32 %s, %s, %s" % (s(sKA), s(sLA), s(sT))); d("s_add_u32 %s, %s, 1" % (s(sKA + 1), s(sKA)))
d("s_lshl1_add_u32 %s, %s, %s" % (s(sKA + 2), s(sLB), s(sT))); d("s_add_u32 %s, %s, 1" % (s(sKA + 3), s(sKA + 2)))
d("s_cmp_eq_u32 %s, 2" % s(sJ)); d("s_cselect_b32 %s, %s, %s" % (s(sKA + 2), s(sKA + 3), s(sKA + 2))); d("s_cselect_b32 %s, 0x%x, %s" % (s(sKA + 3), OOB >> 13, s(sKA + 3)))
d("s_cmp_eq_u32 %s, 1" % s(sJ)); d("s_cselect_b32 %s, 0x%x, %s" % (s(sKA + 3), OOB >> 13, s(sKA + 3)))
d("s_min_u32 %s, %s, %s" % (s(sT), s(sKA), s(sKA + 2)))
d("s_mul_i32 %s, %s, 28" % (s(sT + 1), s(sKH))); d("s_sub_u32 %s, %s, %s" % (s(sT), s(sT), s(sT + 1))); d("s_add_u32 %s, %s, 3" % (s(sT), s(sT)))
d("s_and_b32 %s, %s, 3" % (s(sT + 2), s(sI))); d("s_mul_i32 %s, %s, %d" % (s(sT + 2), s(sT + 2), opt("rho", 6))); d("s_add_u32 %s, %s, 22" % (s(sT + 2), s(sT + 2)))
d("v_add_u32 %s, %s, v1" % (T0, s(sT + 2)))
for _ in range(2): d("v_subrev_u32 %s, 25, %s" % (T1, T0)); d("v_min_u32 %s, %s, %s" % (T0, T0, T1))
d("v_add_u32 %s, %s, %s" % (T0, s(sT), T0)); d("v_subrev_u32 %s, 28, %s" % (T1, T0)); d("v_min_u32 %s, %s, %s" % (T0, T0, T1))
d("v_add_u32 %s, %s, %s" % (T0, s(sT + 1), T0))
for k in range(3): d("v_writelane_b32 %s, %s, %d" % (T0, s(sKA + k), k))
d("v_lshlrev_b32 %s, 13, %s" % (v(vTabA), T0)); d("v_mul_u32_u24 %s, 28672, %s" % (v(vTabW), T0))
for k in range(4): d("s_lshl_b32 %s, %s, 13" % (s(sKA + k), s(sKA + k)))
d("v_readlane_b32 %s, %s, 3" % (s(sAK + 1), v(vTabA))); d("v_readlane_b32 %s, %s, 4" % (s(sAK), v(vTabA)))
d("s_lshl_b32 %s, %s, 13" % (s(sKO), s(sH))); d("s_add_u32 %s, %s, %d" % (s(sKO), s(sKO), 56 * 8192))
d("s_mul_i32 %s, %s, %d" % (s(sWOw), s(sW), 28 * 896))
d("s_lshl1_add_u32 %s, %s, %s" % (s(sT), s(sI), s(sKH))); d("s_lshl_b32 %s, %s, 10" % (s(sT), s(sT))); d("s_lshl3_add_u32 %s, %s, %s" % (s(sT), s(sW), s(sT)))
d("s_add_u32 %s, %s, %d" % (s(sT), s(sT), FL + 32768)); d("v_lshl_add_u32 %s, %s, 7, %s" % (v(vPA), v(L7), s(sT)))
d("s_lshl_b32 %s, %s, 7" % (s(sT), s(sCS))); d("v_mul_u32_u24 %s, 896, %s" % (T0, v(L3))); d("v_lshl_add_u32 %s, %s, 4, %s" % (T0, T2, T0)); d("v_add_u32 %s, %s, %s" % (v(vWB), s(sT), T0))
d("v_add_u32 %s, %d, %s" % (v(vWB + 1), 16 * 896 - 1024, v(vWB))); d("v_add_u32 %s, %d, %s" % (v(vWB + 2), 8 * 896 - 2048, v(vWB))); d("v_add_u32 %s, %d, %s" % (v(vWB + 3), 24 * 896 - 3072, v(vWB)))
d("v_mul_u32_u24 %s, 896, %s" % (T0, v(L5))); d("v_sub_u32 %s, %s, %s" % (v(vWO), v(vWB + 1), T0)); d("v_add_u32 %s, %d, %s" % (v(vWO + 1), 6 * 896 - 2048, v(vWO)))
d("v_lshl_add_u32 %s, %s, 11, %s" % (v(vWBr), v(L5), T3))
for ct in range(1, 4): d("v_xor_b32 %s, %d, %s" % (v(vWBr + ct), 32 * ct, v(vWBr)))
for k in range(4, 12): d("v_add_u32 %s, 65536, %s" % (v(vWBr + k), v(vWBr + k - 4)))
d("s_and_b32 %s, %s, 1" % (s(sT + 1), s(sW))); d("s_lshl1_add_u32 %s, %s, %s" % (s(sT), s(sH), s(sT + 1))); d("s_lshl_b32 %s, %s, 14" % (s(sT), s(sT))); d("s_add_u32 %s, %s, 0x%x" % (s(sT), s(sT), KVB))
d("s_lshr_b32 %s, %s, 1" % (s(sT + 2), s(sW))); d("s_lshl_b32 %s, %s, 13" % (s(sT + 3), s(sT + 2))); d("s_add_u32 %s, %s, %s" % (s(sT + 3), s(sT + 3), s(sT)))
d("v_add_u32 %s, %s, %s" % (v(vKVg), s(sT + 3), v(vL16)))
d("s_lshl_b32 %s, %s, 10" % (s(sT + 3), s(sI))); d("s_add_u32 %s, %s, %s" % (s(sT + 3), s(sT + 3), s(sT))); d("s_lshl_b32 %s, %s, 30" % (s(sT + 2), s(sT + 2))); d("s_add_u32 %s, %s, %s" % (s(sT + 3), s(sT + 3), s(sT + 2)))
d("v_add_u32 %s, %s, %s" % (v(vKVs), s(sT + 3), v(vL16)))
d("s_lshr_b32 %s, %s, 2" % (s(sT), s(sQ))); d("v_add_u32 %s, %s, %s" % (v(vSw), s(sT), v(vL16)))
d("s_add_u32 %s, %s, %d" % (s(sT), s(sT), KVF)); d("v_add_u32 %s, %s, %s" % (v(vKFw), s(sT), v(vL16)))
d("s_lshl_b32 %s, %s, 12" % (s(sT + 1), s(sT + 1))); d("v_add_u32 %s, %s, %s" % (v(vSr), s(sT + 1), v(vL16)))
d("s_lshl4_add_u32 %s, %s, %s" % (s(sT), s(sI), s(sH))); d("s_lshl_b32 %s, %s, 14" % (s(sT), s(sT))); d("s_add_u32 %s, %s, %s" % (s(sT), s(sT), s(sQ))); d("s_add_u32 %s, %s, 0x%x" % (s(sT), s(sT), PRB))
d("v_add_u32 %s, %s, %s" % (v(vPs), s(sT), v(vL16))); d("v_xor_b32 %s, 0x%x, %s" % (v(vPl), 8 << 14, v(vPs)))
d("s_lshl2_add_u32 %s, %s, %s" % (s(sT), s(sI), s(sW))); d("s_lshl1_add_u32 %s, %s, %s" % (s(sT), s(sT), s(sKH))); d("s_mul_i32 %s, %s, %d" % (s(sT), s(sT), 16 * 896))
d("s_lshl_b32 %s, %s, 7" % (s(sT + 1), s(sCS))); d("s_add_u32 %s, %s, %s" % (s(sT), s(sT), s(sT + 1)))
d("v_mul_u32_u24 %s, 896, %s" % (T0, v(LN))); d("v_lshl_add_u32 %s, %s, 3, %s" % (T0, v(LG), T0)); d("v_add_u32 %s, %s, %s" % (v(vO), s(sT), T0))
for k in range(4): d("v_mov_b32 %s, %s" % (v(vC6 + k), s(sE6)))
d("v_and_b32 %s, 1, v1" % T0); d("v_lshlrev_b32 %s, 4, %s" % (T0, T0)); d("v_mov_b32 %s, 0x3f80" % T1); d("v_lshlrev_b32 %s, %s, %s" % (T0, T0, T1))
d("v_lshrrev_b32 %s, 1, %s" % (T1, v(LN))); d("v_lshlrev_b32 %s, 1, %s" % (T4, v(LG))); d("v_sub_u32 %s, %s, %s" % (T1, T1, T4))
for k in (0, 1, 4, 5): d("v_mov_b32 %s, 0" % v(vSEL + k))
for k in range(2): d(Atom(["v_cmp_eq_u32 vcc, %d, %s" % (k, T1), "s_nop 1", "v_cndmask_b32 %s, %s, %s, vcc" % (v(vSEL + 2 + k), v(vSEL), T0)]))
if TWO:
    for k in range(4): d("v_subrev_u32 %s, %d, %s" % (v(vW1s + k), U(3), v(vW1r + k)))
D += MK("late")
S.F += glue(D)

units = []
for st in range(7):
    for kk in range(2):
        ks = 2 * st + kk
        for b in range(2 if TWO else 4):
            n = len(units); pre = []
            if kk == 0 and b == 0:
                pre.append(Need("x%d" % st))
                for k2 in range(2):
                    for rt in range(2): pre.append(("ds_read_b128 %s, %s offset:%d" % (a(xf(2 * st + k2, rt), 4), v(vXr + k2), U(st % 3) + 2048 * rt), "x%d" % st))
                pre += [Mark("xr%d" % st), Need("w%d" % st), W(lg="w"), BAR] + MK("b%d" % st)
            reads = [("ds_read_b64_tr_b16 %s, %s offset:%d" % (v(BUF(n) + 4 * t + 2 * rd, 2), v(vW1r + 2 * (b & 1) + t), (ALOC[st] - U(3) if TWO else U(st % 3)) + 8192 * kk + 2048 * (b >> 1) + 1024 * rd), "w")
                     for t in range(2) for rd in range(2)]
            mf = ["%s %s, %s, %s, %s" % (MF, v(accH(b, t, rt), 4), v(BUF(n) + 4 * t, 4), a(xf(ks, rt), 4), v(bias(b, t) if ks == 0 else accH(b, t, rt), 4))
                  for t in range(2) for rt in range(2)]
            units.append(Unit(pre, reads, mf))
if TWO:
    if opt("sep", 1): M += pipeline(units, 2) + MK("p1"); units = []
    else: units[-1].post = MK("p1")
    CG = {0: [0, 1, 2], 3: [3, 4], 5: [5, 6]} if opt("cg", 0) == 0 else {0: [0], 1: [1, 2], 3: [3, 4], 5: [5, 6]}
    CN = {0: "c0", 1: "c0b", 3: "c1", 5: "c2"}
    for st in range(7):
        for kk in range(2):
            ks = 2 * st + kk
            for b in range(2, 4):
                n = len(units); pre = []
                if kk == 0 and b == 2 and st in CG:
                    pre = [Need("wB%d" % q) for q in CG[st]] + [W(lg="w"), BAR] + MK(CN[st])
                rb, ro = (vW1r, BLOC[st] - U(3)) if BLOC[st] >= U(3) else (vW1s, BLOC[st])
                reads = [("ds_read_b64_tr_b16 %s, %s offset:%d" % (v(BUF(n) + 4 * t + 2 * rd, 2), v(rb + 2 * (b & 1) + t), ro + 8192 * kk + 1024 * rd), "w")
                         for t in range(2) for rd in range(2)]
                mf = ["%s %s, %s, %s, %s" % (MF, v(accH(b, t, rt), 4), v(BUF(n) + 4 * t, 4), a(xf(ks, rt), 4), v(bias(b, t) if ks == 0 else accH(b, t, rt), 4))
                      for t in range(2) for rt in range(2)]
                units.append(Unit(pre, reads, mf))
LA = 2
P2B = pipeline(units, LA)
Q0 += [flag_vg(0, ("pw",), "fPW", after=["late1"]), poll_vg("pPW", vPP, ("fPW", HOP_PW))]
S.checks.append(poll_check("pPW", vPP, 0x0077777777777777, "cPW"))

def mish(b):
    T = [128, 164, 128, 144][b] if TWO else 128 + 16 * (b & 1); H = accH(b, 0, 0); it = []
    for k in range(8): it.append("v_pk_fma_f32 %s, %s, %s, -0.5 op_sel_hi:[1,0,0]" % (v(T + 2 * k, 2), v(H + 2 * k, 2), s(sMC, 2)))
    for k in range(16): it.append("v_exp_f32 %s, %s" % (v(T + k), v(T + k)))
    for k in range(8): it.append("v_pk_add_f32 %s, %s, %s op_sel:[0,1] op_sel_hi:[1,1]" % (v(T + 2 * k, 2), v(T + 2 * k, 2), s(sMC, 2)))
    for k in range(8): it.append("v_pk_fma_f32 %s, %s, %s, 0.5 op_sel_hi:[1,1,0]" % (v(T + 2 * k, 2), v(T + 2 * k, 2), v(T + 2 * k, 2)))
    for k in range(16): it.append("v_rcp_f32 %s, %s" % (v(T + k), v(T + k)))
    for k in range(8): it.append("v_pk_fma_f32 %s, %s, %s, %s neg_lo:[1,0,0] neg_hi:[1,0,0]" % (v(T + 2 * k, 2), v(H + 2 * k, 2), v(T + 2 * k, 2), v(H + 2 * k, 2)))
    for rt in range(2):
        for t in range(2):
            for k in range(2):
                src = T + (t * 2 + rt) * 4 + 2 * k
                it.append("v_cvt_pk_bf16_f32 %s, %s, %s" % (v(accH(b, 0, rt) + 2 * t + k), v(src), v(src + 1)))
        it.append(Mark("ad%d%d" % (b, rt)))
        Q0.append(st_vg(accH(b, 0, rt), vA + rt, s(sKA + b), 0, "act", ["ad%d%d" % (b, rt)]))
    return it + MK("m%d" % b)
SPR = opt("spr", 0)
if SPR == 0: M += P2B + MK("p2")
elif SPR == 1: M += [NeedEv("late"), NeedEv("m0")] + spread(P2B, mish(1)) + MK("p2"); S.F += [NeedEv("p1")] + mish(0) + [NeedEv("p2")] + mish(2) + mish(3)
if SPR == 0: S.F += ([NeedEv("p1")] + mish(0) + mish(1) + [NeedEv("p2")] if TWO else [NeedEv("p2")] + mish(0) + mish(1)) + mish(2) + mish(3)
Q0 += [flag_vg(1, ("act",), "fA"), poll_vg("pA", vPA, (opt("paev", "fA"), HOP_A))]

def lds_win(addr): return vL16 + addr // 65536, addr % 65536
units = []
for ks in range(14):
    for sec in range(2):
        n = len(units); pre = []
        if n == 0: pre = [NeedEv("late"), NeedEv(opt("mfirst", "m3")), Need("pwl"), W(lg="all"), BAR] + MK("b7")
        if PQ == "pwq" and n == opt("pqn", 22): pre = [Need("pwq"), BAR] + MK("b8")
        reads = []
        for t in range(2):
            r, o = lds_win(kv_lds(ks) + 2048 * sec + 1024 * t)
            reads.append(("ds_read_b128 %s, %s offset:%d" % (v(BUF(n) + 4 * t, 4), v(r), o), "w"))
        acc = accV if sec else accK
        mf = []
        for t in range(2):
            for rt in range(2):
                c = v(acc(t, rt), 4) if ks else ("0" if sec else v(vC6, 4))
                mf.append("%s %s, %s, %s, %s" % (MF, v(acc(t, rt), 4), a(xf(ks, rt), 4), v(BUF(n) + 4 * t, 4), c))
        units.append(Unit(pre, reads, mf))
M += pipeline(units, LA) + MK("kv")
PKS = opt("pks", 0); vCE = 20
def padd(d_, a_, b_):
    if PKS: return ["v_add_f32 %s, %s, %s" % (v(d_ + j), v(a_ + j), v(b_ + j)) for j in range(2)]
    return ["v_pk_add_f32 %s, %s, %s" % (v(d_, 2), v(a_, 2), v(b_, 2))]
def phi(A, T):
    it = []
    if PKS:
        for k in range(16): it.append("v_fma_f32 %s, %s, %s, %s" % (v(T + k), v(A + k), s(sPC), v(vCE)))
    else:
        for k in range(8): it.append("v_pk_fma_f32 %s, %s, %s, %s op_sel:[0,0,1] op_sel_hi:[1,0,1]" % (v(T + 2 * k, 2), v(A + 2 * k, 2), s(sPC, 2), s(sPC, 2)))
    for k in range(16): it.append("v_exp_f32_e64 %s, %s clamp" % (v(T + k), v(T + k)))
    for k in range(16): it.append("v_max_f32 %s, %s, %s" % (v(A + k), s(sE6), v(A + k)))
    for k in range(8): it += padd(A + 2 * k, A + 2 * k, T + 2 * k)
    return it
def pack(d_, lo, hi):
    return ["v_cvt_pk_bf16_f32 %s, %s, %s" % (v(d_), v(lo), v(lo + 1)), "v_cvt_pk_bf16_f32 %s, %s, %s" % (v(d_ + 1), v(lo + 2), v(lo + 3)),
            "v_cvt_pk_bf16_f32 %s, %s, %s" % (v(d_ + 2), v(hi), v(hi + 1)), "v_cvt_pk_bf16_f32 %s, %s, %s" % (v(d_ + 3), v(hi + 2), v(hi + 3))]
def settag(r): return "v_and_or_b32 %s, %s, %s, %s" % (v(r + 3), v(r + 3), s(sFF), v(vTH))
qunits = []
for ks in range(14):
    n = len(qunits); reads = []
    for t in range(2):
        r, o = lds_win(q_lds(2 * ks + t))
        reads.append(("ds_read_b128 %s, %s offset:%d" % (v(BUF(n) + 4 * t, 4), v(r), o), "w"))
    mf = ["%s %s, %s, %s, %s" % (MF, v(accQ(t, rt), 4), v(BUF(n) + 4 * t, 4), a(xf(ks, rt), 4), v(accQ(t, rt), 4) if ks else v(vC6, 4)) for t in range(2) for rt in range(2)]
    qunits.append(Unit([], reads, mf))
ke = (["v_mov_b32 %s, %s" % (v(vCE), s(sPC + 1))] if PKS else []) + phi(accK(0, 0), vPT)
for dt in range(2): ke += pack(accV(dt, 0), accV(dt, 0), accV(dt, 1))
ke.append("v_mov_b32 %s, 0x3f803f80" % v(vT))
for dt in range(2): ke += pack(accK(dt, 0), accK(dt, 0), accK(dt, 1))
for k in range(4): ke.append("v_cndmask_b32_e64 %s, %s, %s, %s" % (v(accV(1, 0) + k), v(accV(1, 0) + k), v(vT), s(sM8, 2)))
KVT = [accK(0, 1), accK(1, 1), accV(0, 1), accV(1, 1)]
for dt in range(2):
    for et in range(2): ke.append("%s %s, %s, %s, 0" % (MF, v(KVT[2 * dt + et], 4), v(accK(dt, 0), 4), v(accV(et, 0), 4)))
ke2 = [NeedEv("m3")] + [("ds_write_b128 %s, %s offset:%d" % (v(vSw), v(KVT[T], 4), 4096 * T), "sw") for T in range(4)]
ke2 += [W(lg="sw"), BAR] + MK("bk1")
ke2 += ["ds_read_b128 %s, %s offset:%d" % (v(128 + 16 * dt + 4 * k, 4), v(vSr), 8192 * dt + 1024 * k) for dt in range(2) for k in range(4)]
ke3 = []
for dt in range(2):
    b = 128 + 16 * dt
    for k in range(2): ke3 += padd(b + 2 * k, b + 2 * k, b + 4 + 2 * k)
    for k in range(2): ke3 += padd(b + 8 + 2 * k, b + 8 + 2 * k, b + 12 + 2 * k)
    for k in range(2): ke3 += padd(b + 2 * k, b + 2 * k, b + 8 + 2 * k)
ke3 += pack(128, 128, 144) + [settag(128)] + MK("kvd") + [Issued("kvp")]
g = st_vg(128, vKVs, "0", 0, "kvp", ["kvd"]); g.mark = "kvst"; Q0.append(g)
qs = pipeline(qunits, LA)
ism = lambda it: isinstance(it, str) and it.startswith("v_mfma")
def cut(seq, nm):
    c = 0
    for k, it in enumerate(seq):
        if ism(it):
            c += 1
            if c > nm: return seq[:k], seq[k:]
    return seq, []
qa, rest = cut(qs, opt("qa", 36)); qb, rest = cut(rest, 4); qc, qd = cut(rest, 8)
M += spread(qa, ke, start=2) + qb + ke2 + qc + ke3 + qd
M += [Need("wb0"), Need("wb1"), Need("wb2"), W(lg="all"), BAR] + MK("bq")
S.checks.append(poll_check("pA", vPA, None, "cA"))
NPRE = min(NLAND, opt("npre", 6))
Q2 += [act_vg(n, ["cA_"]) for n in range(3, 3 + NPRE)]

ph = phi(accQ(0, 0), vPT)
P0 = 16 if PKS else 8
qe = [NeedEv("bq")] + ph[:P0] + ["v_exp_f32_e64 %s, -%s" % (v(vG + rt), v(vPT + (2 + rt) * 4 + 3)) for rt in range(2)]
qe += ph[P0:P0 + 4] + ["v_add_f32 %s, 1.0, %s" % (v(vG + rt), v(vG + rt)) for rt in range(2)] + ph[P0 + 4:P0 + 8]
qe += ["v_rcp_f32 %s, %s" % (v(vG + rt), v(vG + rt)) for rt in range(2)] + ph[P0 + 8:]
for rt in range(2): qe += pack(accQ(0, rt), accQ(0, rt), accQ(1, rt))
qe += ["v_and_b32 %s, 0xffff, %s" % (v(accQ(0, rt) + 3), v(accQ(0, rt) + 3)) for rt in range(2)]
qe += ["v_sub_f32 %s, 1.0, %s" % (v(vOG), v(vG))] + MK("qe")
def o_chain():
    it = []
    for gr in range(2):
        regs = [128 + 16 * gr + 4 * k for k in range(4)]
        it += [Need("kvg%d" % gr), tag_check("cKV%d" % gr, regs, ["s_movk_i32 %s, %d" % (s(sPM), 4096 * gr)] + [ld(regs[k], vKVg, s(sPM), 1024 * k) for k in range(4)])]
        for k in range(4):
            first = gr == 0 and k == 0
            it.append("%s %s, %s, %s, %s" % (MF, v(160, 4), v(vSEL + 2, 4), v(regs[k], 4), "0" if first else v(160, 4)))
            it.append("%s %s, %s, %s, %s" % (MF, v(164, 4), v(vSEL, 4), v(regs[k], 4), "0" if first else v(164, 4)))
    it += DELAY(2) + pack(160, 160, 164) + [("ds_write_b128 %s, %s" % (v(vKFw), v(160, 4)), "kvf"), W(lg="kvf"), BAR] + MK("bk2")
    r, o = lds_win(KVF)
    it += ["ds_read_b128 %s, %s offset:%d" % (v(168 + 4 * k, 4), v(r), o + 1024 * k) for k in range(4)]
    it += DELAY(6)
    O = lambda et, rt: 128 + 8 * rt + 4 * et
    for half in range(2):
        for rt in range(2):
            for et in (1, 0): it.append("%s %s, %s, %s, %s" % (MF, v(O(et, rt), 4), v(168 + 8 * half + 4 * et, 4), v(accQ(0, rt), 4), v(O(et, rt), 4) if half else "0"))
    it += DELAY(2)
    sc = lambda rt: vPT + 2 * rt
    for rt in range(2): it.append("v_add_f32 %s, %s, %s" % (v(sc(rt)), s(sE6), v(O(1, rt) + 3)))
    for rt in range(2): it.append("v_rcp_f32 %s, %s" % (v(sc(rt)), v(sc(rt))))
    for rt in range(2): it.append("v_mul_f32 %s, %s, %s" % (v(sc(rt)), v(sc(rt)), v(vG + rt)))
    for rt in range(2):
        if PKS:
            for k in range(8): it.append("v_mul_f32 %s, %s, %s" % (v(O(0, rt) + k), v(O(0, rt) + k), v(sc(rt))))
        else:
            for k in range(4): it.append("v_pk_mul_f32 %s, %s, %s op_sel_hi:[1,0]" % (v(O(0, rt) + 2 * k, 2), v(O(0, rt) + 2 * k, 2), v(sc(rt), 2)))
        it += pack(O(0, rt), O(0, rt), O(1, rt)) + [settag(O(0, rt)), Mark("od%d" % rt)]
    return it + [Issued("o")] + MK("ost")
def o_queue():
    S.Q[1].append(VG([ld(128 + 4 * k, vKVg, "0", 1024 * k) for k in range(4)], "kvg0", at=("kvst", HOP_KV), **FAB))
    S.Q[1].append(VG(["s_movk_i32 %s, 4096" % s(sSO)] + [ld(144 + 4 * k, vKVg, s(sSO), 1024 * k) for k in range(4)], "kvg1", at=("kvst", HOP_KV), **FAB))
    for rt in range(2): S.Q[0].append(st_vg(128 + 8 * rt, vA + rt, s(sKO), 0, "o", ["od%d" % rt]))
S.run(M)

if S.cur is not None: S.force(S.cur.tag)
E("s_cmp_eq_u32 %s, 7" % s(sCS)); E("s_cbranch_scc1 L_idle")
GS = ("n", "w", "cread", "stdata", "vm", "lg", "smem", "smem_regs")
savedG = {k: copy.deepcopy(getattr(G, k)) for k in GS}
savedS = dict(t=S.t, mf=S.mf, ta=S.ta, ev=dict(S.ev), comp=dict(S.comp), last=S.last, fl=list(S.fl), Q=[[(g, g.pos) for g in q] for q in S.Q], checks=list(S.checks), F=list(S.F))

def wo_reads(hh):
    un = WOU[hh // 4]
    return [("ds_read_b64_tr_b16 %s, %s offset:%d" % (a(wof(hh) + 4 * ct + 2 * rd, 2), v(vWBr + 4 * (un // 4) + ct), U(un % 4) + 4096 * (hh % 4) + 1024 * rd), "wor") for ct in range(4) for rd in range(2)]
NRES = (256 - 8 * NLAND) // 16
S.F += qe + o_chain()
TAIL = opt("tail", 0); WPRE = opt("wpre", 8)
if TAIL: S.F += [NeedEv("bw2")] + sum((wo_reads(hh) for hh in range(WPRE)), []) + [Mark("wor1")]
else: S.F += [NeedEv("bw2")] + sum((wo_reads(hh) for hh in range(8)), []) + [NeedEv("bw3")] + sum((wo_reads(hh) for hh in range(8, NRES)), []) + [Mark("wor1")]
o_queue()
rest = [act_vg(n, ["cA_"] + (["km%d" % (n - NLAND)] if n - NLAND >= 3 else [])) for n in range(3 + NPRE, 28)]
ins = {2: [wo_vg(0, ["bq"])], 4: [] if TWO and opt("wo1e", 1) else [wo_vg(1, ["bq"])], 6: [w2_vg(6, ["bq"])], 9: [wo_vg(2, ["bw2"])], 11: [wo_vg(3, ["bw2"])]}
rest += [act1_vg(n, 0, ["cA_", "km%d" % (27 - NLAND)]) for n in range(N0, 28)]
for k, g in enumerate(rest):
    Q2 += ins.get(k, []) + [g]
for gr in range(4):
    it = []
    for k in range(4):
        hh = 4 * gr + k
        it += ["s_mov_b32 %s, %d" % (s(sSO), (56 + hh) * 8192), ld(ol(hh), vA, s(sSO), 0)]
    (Q1 if opt("oprio", 1) else Q2).append(VG(it, "ol%d" % gr, at=("ost", HOP_O), **FAB))
units = []
for n in range(28):
    un = W2U[n // 4]
    for cp in range(2):
        k = len(units); pre = []
        if cp == 0 and n == 12: pre = [Need("wb3"), Need("wb4"), Need("wb5"), Need("wo0"), Need("wo1"), W(lg="w"), BAR] + MK("bw2")
        if cp == 0 and n == 24: pre = [Need("wb6")] + ([] if TAIL == 1 else [Need("wo2"), Need("wo3")]) + [BAR] + MK("bw3")
        reads = [("ds_read_b64_tr_b16 %s, %s offset:%d" % (v(BUF(k) + 4 * t + 2 * rd, 2), v(vWBr + 4 * (un // 4) + 2 * cp + t), U(un % 4) + 4096 * (n % 4) + 1024 * rd), "w")
                 for t in range(2) for rd in range(2)]
        B = lambda rt: v(accH(n, 0, rt), 4) if n < 3 else a(land(n) + 4 * rt, 4)
        mf = ["%s %s, %s, %s, %s" % (MF, v(accB(rt, 2 * cp + t), 4), v(BUF(k) + 4 * t, 4), B(rt), v(accB(rt, 2 * cp + t), 4) if n else "0")
              for t in range(2) for rt in (range(2) if n < N0 else (1,))]
        post = []
        if cp == 1: post = MK("km%d" % n) + ([Need("al%d" % (n + 1))] if 2 <= n < 27 else [])
        if SKG and n == 27 and cp == 1: post += [Need("am%d" % N0)]
        units.append(Unit(pre, reads, mf, post))
for n in range(N0, 28):
    un = W2U[n // 4]
    for cp in range(2):
        k = len(units)
        reads = [("ds_read_b64_tr_b16 %s, %s offset:%d" % (v(BUF(k) + 4 * t + 2 * rd, 2), v(vWBr + 4 * (un // 4) + 2 * cp + t), U(un % 4) + 4096 * (n % 4) + 1024 * rd), "w")
                 for t in range(2) for rd in range(2)]
        mf = ["%s %s, %s, %s, %s" % (MF, v(accB(0, 2 * cp + t), 4), v(BUF(k) + 4 * t, 4), a(land(n), 4), v(accB(0, 2 * cp + t), 4)) for t in range(2)]
        post = []
        if cp == 1 and n < 27: post = [Need("am%d" % (n + 1))]
        units.append(Unit([], reads, mf, post))
if SKG:
    pp = []
    for ct in range(4):
        r = accB(1, ct)
        pp += ["v_perm_b32 %s, %s, %s, %s" % (v(r), v(vTH), v(r), s(sP0)), "v_perm_b32 %s, %s, %s, %s" % (v(r + 1), v(vTH), v(r + 1), s(sP1)), Mark("pd%d" % ct)]
        Q0.append(st_vg(r, vPs, "0", 1024 * ct, "pst", ["pd%d" % ct]))
    u = units[55]; u.post = u.post[:-1] + DELAY(1) + pp + [Issued("pst")] + MK("pst") + u.post[-1:]
M = pipeline(units, 2) + MK("pb")
wl = [] if TAIL else sum((wo_reads(hh) for hh in range(NRES, 16)), [])
M += wl[:8]
for ct in range(0 if SKG else 4):
    r = accB(1, ct)
    M += ["v_perm_b32 %s, %s, %s, %s" % (v(r), v(vTH), v(r), s(sP0)), "v_perm_b32 %s, %s, %s, %s" % (v(r + 1), v(vTH), v(r + 1), s(sP1)), Mark("pd%d" % ct)]
    Q0.append(st_vg(r, vPs, "0", 1024 * ct, "pst", ["pd%d" % ct]))
    M += wl[8 + 8 * ct:16 + 8 * ct]
M += (wl[8:] if SKG else wl[40:] + [Issued("pst")] + MK("pst")) + [NeedEv("wor1")]
WR = sum((wo_reads(hh) for hh in range(WPRE, 16)), []) if TAIL else []
if TAIL == 1:
    k8 = 8 * (8 - WPRE); M += WR[:k8] + [Need("wo2"), Need("wo3"), BAR] + MK("bw4"); WR = WR[k8:]
M += WR[:8]; WR = WR[8:]; WRATE = opt("wrate", 2)
Q1.append(VG([ld(prl(ct), vPl, "0", 1024 * ct) for ct in range(4)], "pl", at=(opt("plev", "pst"), HOP_P), **FAB))
for gr in range(4):
    regs = [ol(4 * gr + k) for k in range(4)]
    rl = []
    for k in range(4): rl += ["s_mov_b32 %s, %d" % (s(sPM), (56 + 4 * gr + k) * 8192), ld(regs[k], vA, s(sPM), 0)]
    M += [Need("ol%d" % gr), tag_check("cO%d" % gr, regs, rl)]
    for k in range(4):
        hh = 4 * gr + k
        for ct in range(4):
            M.append("%s %s, %s, %s, %s" % (MF, v(accO(ct), 4), a(wof(hh) + 4 * ct, 4), v(ol(hh), 4), v(accO(ct), 4) if hh else "0"))
            M += WR[:WRATE]; WR = WR[WRATE:]
M += MK("po")
body = []
for ct in range(4): body += ["v_xor_b32 %s, %s, %s" % (v(prl(ct) + k), s(sTB + k), v(prl(ct) + k)) for k in range(2)]
t = v(vT)
body += ["v_or3_b32 %s, %s, %s, %s" % (t, v(prl(0)), v(prl(0) + 1), v(prl(1))), "v_or3_b32 %s, %s, %s, %s" % (t, t, v(prl(1) + 1), v(prl(2))),
         "v_or3_b32 %s, %s, %s, %s" % (t, t, v(prl(2) + 1), v(prl(3))), "v_or_b32 %s, %s, %s" % (t, t, v(prl(3) + 1)),
         "v_and_b32 %s, 0xff, %s" % (t, t), "v_cmp_ne_u32 vcc, 0, %s" % t, "s_cmp_lg_u64 vcc, 0"]
M += [Need("pl"), checked("cP", body, [ld(prl(ct), vPl, "0", 1024 * ct) for ct in range(4)])]
for ct in range(4):
    r = accB(0, ct)
    for k in range(2): M.append("v_pk_add_f32 %s, %s, %s" % (v(r + 2 * k, 2), v(r + 2 * k, 2), v(prl(ct) + 2 * k, 2)))
for ct in range(4):
    r = accB(0, ct)
    for k in range(2): M.append("v_pk_fma_f32 %s, %s, %s, %s op_sel_hi:[1,0,1]" % (v(r + 2 * k, 2), v(r + 2 * k, 2), v(vOG, 2), v(accO(ct) + 2 * k, 2)))
    M.append("v_cvt_pk_bf16_f32 %s, %s, %s" % (v(r), v(r), v(r + 1))); M.append("v_cvt_pk_bf16_f32 %s, %s, %s" % (v(r + 1), v(r + 2), v(r + 3)))
    M.append("buffer_store_dwordx2 %s, %s, %s, 0 offen offset:%d" % (v(r, 2), v(vO), s(SOUT, 4), 32 * ct))
S.run(M); S.drain(); S.mark("end")
print("sim:", " ".join("%s=%d" % (n, t) for t, n in S.log if not n.startswith(("ad", "xr", "od", "pd")) and not n.endswith("_")), file=sys.stderr)
if "--vlog" in sys.argv: print(" ".join("%s@%d>%d" % (tg, t, c) for t, tg, c in S.vlog), file=sys.stderr)
E("s_cmp_lg_u32 s2, 0"); E("s_cbranch_scc1 L_fin")
E("v_mov_b32 %s, 0" % v(vT))
E("buffer_store_dwordx2 %s, %s, %s, 0 offen sc1" % (v(vN, 2), v(vT), s(SWS, 4)))
G.label("L_fin")
def dump_stamps():
    if not STAMPS: return
    G.raw("  s_memrealtime s[100:101]\n  s_waitcnt vmcnt(0) lgkmcnt(0)\n  s_memrealtime s[4:5]\n  s_waitcnt lgkmcnt(0)")
    G.raw("  s_lshl2_add_u32 s3, s2, %s\n  s_mul_i32 s3, s3, 80\n  s_add_u32 s3, s3, 0x%x\n  v_mov_b32 v2, s3" % (s(sW), STB))
    for k, r in enumerate([KA + 2 * k for k in range(8)] + [100, 4]):
        G.raw("  v_mov_b32 v4, s%d\n  v_mov_b32 v5, s%d\n  buffer_store_dwordx2 v[4:5], v2, %s, 0 offen offset:%d\n  s_nop 1" % (r, r + 1, s(SWS, 4), 8 * k))
dump_stamps()
G.label("L_end")
G.raw("  s_endpgm")
G.label("L_idle")
for k in GS: setattr(G, k, savedG[k])
SEL = []
S.t, S.mf, S.ta, S.ev, S.comp, S.last, S.fl = (savedS[k] for k in ("t", "mf", "ta", "ev", "comp", "last", "fl"))
S.cur = None
keep = lambda g: not (g.tag.startswith("al") or g.tag.startswith("wb") or g.tag.startswith("pA"))
for qi in range(3):
    S.Q[qi][:] = [g for g, p in savedS["Q"][qi] if keep(g)]
    for g, p in savedS["Q"][qi]: g.pos = p
S.checks = []
S.F = savedS["F"] + qe + o_chain()
o_queue()
S.drain()
G.raw("  s_endpgm")
emit_spins()
G.label("L_codeend")

hdr = open("cdna_kernels/%s.s.ref" % NAME).read().split("; Override launch geometry")[0]
txt = hdr + """; @launch grid=(256,1,1) block=(256,1,1) lds=163840
.amdgcn_target "amdgcn-amd-amdhsa--gfx950"
.text
.globl {N}_kernel
.p2align 8
.type {N}_kernel,@function
{N}_kernel:
{B}.section .rodata,"a"
.p2align 6
.amdhsa_kernel {N}_kernel
  .amdhsa_next_free_vgpr 512
  .amdhsa_next_free_sgpr 102
  .amdhsa_accum_offset 256
  .amdhsa_group_segment_fixed_size 0
  .amdhsa_kernarg_size 88
  .amdhsa_user_sgpr_count 2
  .amdhsa_user_sgpr_kernarg_segment_ptr 1
  .amdhsa_system_sgpr_workgroup_id_x 1
.end_amdhsa_kernel
""".format(N=NAME, B=G.text())
if "--cyc" in sys.argv: txt = txt.replace("s_memrealtime", "s_memtime")
open(OUTF, "w").write(txt)
print("stats", G.stats, "nops", G.nops, "maxvm", G.maxvm, "stamps", stn, file=sys.stderr)
open(OUTF + ".names", "w").write(" ".join(stn + ["-"] * (8 - len(stn)) + ["end", "drain"]))
```
